```python
import torch

def _softmax(x, axis=-1):
    return torch.softmax(x, dim=axis)
def _gelu(x):
    return torch.nn.functional.gelu(x, approximate="tanh")
def _silu(x):
    return torch.nn.functional.silu(x)
def _sigmoid(x):
    return torch.sigmoid(x)
def _layernorm(x, axis=-1, eps=1e-5):
    m = x.mean(dim=axis, keepdim=True)
    v = x.var(dim=axis, keepdim=True, unbiased=False)
    return (x - m) / torch.sqrt(v + eps)
def _scatter_add(tgt, idx, src, axis=0):
    return tgt.clone().index_add_(axis, idx, src)
def _segment_sum(src, seg, n):
    out = torch.zeros((n,) + src.shape[1:], dtype=src.dtype)
    return out.index_add_(0, seg, src)
def _pad(x, pw):
    flat = tuple(v for pair in reversed(pw) for v in pair)
    return torch.nn.functional.pad(x, flat)

kernel_name = 'standalone__global_local_windowed_global_tokens__prompt'

def setup_inputs():

    _w = (lambda a: (lambda t: t.to(torch.bfloat16) if t.is_floating_point() else t)(torch.as_tensor(a)))
    B, H, S, D = 1, 32, 2048, 192
    return {
        "q": _w((lambda *s: torch.randn(*s, dtype=torch.bfloat16) * 0.8)(B, H, S, D)),
        "k": _w((lambda *s: torch.randn(*s, dtype=torch.bfloat16) * 0.8)(B, H, S, D)),
        "v": _w((lambda *s: torch.randn(*s, dtype=torch.bfloat16) * 0.05)(B, H, S, D)),
        "window": 32,
        "n_global": 2,
    }

def reference(q, k, v, window, n_global):
    B, H, S, D = q.shape
    scale = D ** -0.5
    scores = torch.einsum("bhqd,bhkd->bhqk", q, k) * scale
    idx = torch.arange(S)
    dist = idx[:, None] - idx[None, :]
    local = (dist <= window) & (dist >= -window)
    is_global_q = (idx < n_global)[:, None]
    is_global_k = (idx < n_global)[None, :]
    mask = local | is_global_q | is_global_k
    scores = torch.where(mask[None, None], scores, -1e9)
    p = _softmax(scores, axis=-1)
    return torch.einsum("bhqk,bhkd->bhqd", p, v)
```

```python
import re

REG_RE = re.compile(r"(?<![\w.])([vas])(?:(\d+)|\[(\d+):(\d+)\])(?![\w])")


def regs_of(op):
    out = set()
    for m in REG_RE.finditer(op):
        k = m.group(1)
        if m.group(2) is not None:
            out.add((k, int(m.group(2))))
        else:
            for i in range(int(m.group(3)), int(m.group(4)) + 1):
                out.add((k, i))
    if re.search(r"\bvcc\b", op):
        out.add(("vcc", 0))
    if re.search(r"\bm0\b", op):
        out.add(("m0", 0))
    if re.search(r"\bexec\b", op):
        out.add(("exec", 0))
    return out


TRANS = ("v_exp_f32", "v_log_f32", "v_rcp_f32", "v_rsq_f32", "v_sqrt_f32")


class Ins:
    def __init__(self, text):
        self.text = text
        t = text.split(";")[0].strip()
        self.label = t.endswith(":")
        self.mn = t.split()[0] if t else ""
        rest = t[len(self.mn):].strip()
        self.ops = [o.strip() for o in rest.split(",")] if rest else []
        self.r, self.w = set(), set()
        self.kind = "other"
        self.srcc = set()
        self.states = 1
        mn = self.mn
        R = [regs_of(o) for o in self.ops]
        if self.label or not mn or mn.startswith("."):
            self.kind = "none"
            self.states = 0
        elif mn == "s_nop":
            self.kind = "nop"
            self.states = int(self.ops[0]) + 1
        elif mn.startswith("v_mfma"):
            self.kind = "mfma"
            self.w = R[0]
            self.ab = R[1] | R[2]
            self.srcc = R[3]
            self.r = self.ab | self.srcc
            self.passes = 4 if "16x16" in mn else 8
        elif mn.startswith("v_permlane"):
            self.kind = "valu"
            self.perm = True
            self.w = R[0] | R[1]
            self.r = R[0] | R[1]
        elif mn.startswith("v_cmp"):
            self.kind = "valu"
            self.w = R[0]
            self.r = set().union(*R[1:])
        elif mn.startswith("v_readfirstlane") or mn.startswith("v_readlane"):
            self.kind = "valu"
            self.rl = True
            self.w = R[0]
            self.r = set().union(*R[1:])
        elif mn.startswith("v_"):
            self.kind = "valu"
            self.w = R[0]
            self.r = set().union(*R[1:]) if len(R) > 1 else set()
            if mn.startswith(("v_fmac", "v_pk_fmac")):
                self.r |= R[0]
            if "_co_" in mn:
                self.w |= R[1]
        elif mn.startswith("ds_"):
            self.kind = "ds"
            if mn.startswith("ds_read") or "_rtn_" in mn:
                self.w = R[0]
                self.r = set().union(*R[1:])
            else:
                self.r = set().union(*R)
        elif mn.startswith("buffer_") or mn.startswith("global_"):
            self.kind = "vmem"
            is_lds = re.search(r"\blds\b", t) is not None
            if is_lds:
                self.r = set().union(*R) | {("m0", 0)}
                self.ldsdma = True
            elif "load" in mn:
                self.w = R[0]
                self.r = set().union(*R[1:])
            elif "atomic" in mn:
                self.r = set().union(*R)
                if re.search(r"\bsc0\b", t):
                    self.w = R[0]
            elif "store" in mn:
                self.r = set().union(*R)
                if "x3" in mn or "x4" in mn:
                    self.widedata = R[0]
            else:
                self.r = set().union(*R) if R else set()
        elif mn.startswith("s_"):
            self.kind = "salu"
            if mn.startswith(("s_cmp", "s_bitcmp", "s_cbranch", "s_branch", "s_waitcnt", "s_barrier", "s_endpgm", "s_setprio", "s_sleep")):
                self.r = set().union(*R) if R else set()
            else:
                self.w = R[0]
                self.r = set().union(*R[1:]) if len(R) > 1 else set()
                if "saveexec" in mn:
                    self.w = self.w | {("exec", 0)}


def need(prod, cons):
    n = 0
    pk, ck = prod.kind, cons.kind
    vw = {x for x in prod.w if x[0] in "va" and x[0] != "vcc"}
    sw = {x for x in prod.w if x[0] in ("s", "vcc")}
    if pk == "valu":
        if ck == "mfma" and vw & cons.r:
            n = max(n, 2)
        if ck == "valu" and getattr(cons, "perm", False) and vw & cons.r:
            n = max(n, 2)
        if ck == "valu" and "dpp" in cons.text and vw & cons.r:
            n = max(n, 2)
        if ck == "valu" and getattr(cons, "rl", False) and vw & cons.r:
            n = max(n, 1)
        if prod.mn.startswith(TRANS) and ck == "valu" and vw & cons.r:
            n = max(n, 1)
        if sw & cons.r:
            if ck == "valu":
                n = max(n, 4 if getattr(cons, "rl", False) else 2)
            if ck == "vmem":
                n = max(n, 5)
            if ck == "salu":
                n = max(n, 1)
        if ("exec", 0) in prod.w and ck in ("valu", "mfma"):
            n = max(n, 5)
    if pk == "salu":
        if ("m0", 0) in prod.w and getattr(cons, "ldsdma", False):
            n = max(n, 1)
    if pk == "mfma":
        P = prod.passes
        far = {4: 8, 8: 12}[P]
        if ck == "mfma":
            if prod.w & cons.ab:
                n = max(n, far)
            if prod.w & cons.srcc and prod.w != cons.srcc:
                n = max(n, {4: 6, 8: 10}[P])
            if prod.w & cons.w and prod.w != cons.srcc:
                n = max(n, far)
        elif ck in ("valu", "ds", "vmem"):
            if prod.w & (cons.r | cons.w):
                n = max(n, far)
            if ck == "valu" and prod.srcc & cons.w:
                n = max(n, {4: 3, 8: 7}[P])
            if ck in ("ds", "vmem") and prod.srcc & cons.w:
                n = max(n, {4: 3, 8: 7}[P])
    if pk == "vmem" and getattr(prod, "widedata", None):
        if prod.widedata & cons.w:
            n = max(n, 2)
    return n


class Asm:
    def __init__(self):
        self.lines = []
        self.vm = []
        self.lg = []

    def __call__(self, text, tag=None):
        for t in text.split("\n"):
            t = t.strip()
            if not t:
                continue
            i = Ins(t)
            self.lines.append(i)
            if i.kind == "vmem" and not i.mn.startswith(("buffer_inv", "buffer_wbl2")):
                self.vm.append(tag)
            elif i.kind == "ds":
                self.lg.append(tag)

    def label(self, name):
        self.lines.append(Ins(name + ":"))

    def comment(self, c):
        self.lines.append(Ins("; " + c))

    def _count(self, q, tags):
        if not isinstance(tags, (list, tuple, set)):
            tags = [tags]
        idx = [k for k, t in enumerate(q) if t in tags]
        if not idx:
            return None
        last = max(idx)
        n = len(q) - 1 - last
        del q[: last + 1]
        return n

    def wait(self, vm=None, lg=None, slack_vm=0):
        parts = []
        if vm is not None:
            if vm == "all":
                n = 0
                self.vm.clear()
            else:
                n = self._count(self.vm, vm)
            if n is not None:
                n = max(0, n - slack_vm)
                parts.append(f"vmcnt({min(n, 63)})")
        if lg is not None:
            if lg == "all":
                n = 0
                self.lg.clear()
            else:
                n = self._count(self.lg, lg)
            if n is not None:
                parts.append(f"lgkmcnt({min(n, 15)})")
        if parts:
            self.lines.append(Ins("s_waitcnt " + " ".join(parts)))

    def finish(self):
        L = self.lines
        out = []
        labels = {}
        pending = {}
        for ins in L:
            if ins.label:
                out.append(ins)
                labels[ins.mn[:-1]] = len(out) - 1
                continue
            if ins.kind == "none":
                out.append(ins)
                continue
            req = self._required(out, len(out) - 1, ins, pending)
            while req > 0:
                k = min(req, 16)
                out.append(Ins(f"s_nop {k-1}"))
                req -= k
            out.append(ins)
            if ins.mn.startswith(("s_cbranch", "s_branch")):
                tgt = ins.ops[0]
                assert tgt not in labels, "backward branch not supported by hazard pass: " + tgt
                pending.setdefault(tgt, []).append(len(out) - 1)
        self.out = out
        return "\n".join(("" if i.label else "    ") + i.text for i in out) + "\n"

    def _required(self, out, start, cons, pending):
        best = 0
        stack = [(start, 0)]
        seen = set()
        while stack:
            k, dist = stack.pop()
            while k >= 0 and dist < 21:
                if (k, dist) in seen:
                    break
                seen.add((k, dist))
                p = out[k]
                if p.label:
                    for b in pending.get(p.mn[:-1], []):
                        stack.append((b, dist))
                    kk = k - 1
                    while kk >= 0 and out[kk].kind == "none" and not out[kk].label:
                        kk -= 1
                    if kk >= 0 and out[kk].mn in ("s_branch", "s_endpgm"):
                        break
                    k -= 1
                    continue
                if p.kind != "none":
                    n = need(p, cons)
                    if n - dist > best:
                        best = n - dist
                    dist += p.states
                k -= 1
        return best
```

```python
import sys, struct
from asmdsl import Asm

KN = "standalone__global_local_windowed_global_tokens__prompt_kernel"
HEADB = 786432
TILEB = 6144
VIMG = 320 * 384
SCRB = 9216
XCH = VIMG + 4 * SCRB
LDS_TOTAL = XCH + 1024
SCALE = 192 ** -0.5 * 1.4426950408889634
BIG = 0xF1000000


def f2u(x):
    return struct.unpack("<I", struct.pack("<f", x))[0]


HEADER = """; Windowed (|i-j|<=32) + 2 global tokens attention, B=1 H=32 S=2048 D=192, bf16.
; @launch grid=(256,1,1) block=(256,1,1) lds={lds}
.amdgcn_target "amdgcn-amd-amdhsa--gfx950"
.text
.globl {kn}
.p2align 8
.type {kn},@function
{kn}:
"""
FOOTER = """
.section .rodata,"a"
.p2align 6
.amdhsa_kernel {kn}
  .amdhsa_next_free_vgpr 512
  .amdhsa_next_free_sgpr 96
  .amdhsa_accum_offset 256
  .amdhsa_group_segment_fixed_size 0
  .amdhsa_kernarg_size 64
  .amdhsa_user_sgpr_count 2
  .amdhsa_user_sgpr_kernarg_segment_ptr 1
  .amdhsa_system_sgpr_workgroup_id_x 1
  .amdhsa_float_denorm_mode_32 3
.end_amdhsa_kernel
"""


def V(i, n=1):
    return f"v{i}" if n == 1 else f"v[{i}:{i+n-1}]"


def A(i, n=1):
    return f"a{i}" if n == 1 else f"a[{i}:{i+n-1}]"


class R:
    def __init__(self, f, b):
        self.f, self.b = f, b

    def __call__(self, off=0, n=1):
        i = self.b + off
        return f"{self.f}{i}" if n == 1 else f"{self.f}[{i}:{i+n-1}]"


def gen(lf="nt", sf="nt", hold=2, stamps=False, gf=""):
    e = Asm()
    SQ, SK, SV, SO, SW, SD = "s[4:7]", "s[8:11]", "s[12:15]", "s[16:19]", "s[20:23]", "s[24:27]"
    vL, vLin, vLin4, vLinM = 0, 1, 2, 3
    vCW, vCR, vOW, vOR, vVR, vVG = 4, 7, 9, 13, 16, 20
    vVD, vGR, vGV, vPW, vPR, vMX, vWS, vML = 21, 24, 25, 28, 29, 30, 31, 32
    vJ, vG4, vBig = 33, 34, 35
    vT = 36
    B = R("v", 48); S = R("v", 72); P = R("v", 96); O = R("v", 108); KG = R("v", 156)
    Kt = [R("a", 24 * u) for u in range(8)]
    Qt = [R("a", 192), R("a", 216), R("v", 180), R("v", 204)]
    F012 = [R("v", 228), R("v", 240), R("a", 240)]
    QG = R("v", 108)
    nst = [0]

    def stamp():
        if stamps:
            k = nst[0]
            e(f"s_memrealtime s[{64+2*k}:{65+2*k}]")
            e("s_waitcnt lgkmcnt(0)")
            e.lg.clear()
            nst[0] += 1

    e("s_cmp_ge_u32 s2, 256")
    e("s_cbranch_scc1 L_end")
    e("s_load_dwordx2 s[8:9], s[0:1], 8")
    e("s_load_dwordx2 s[4:5], s[0:1], 0")
    e("s_load_dwordx2 s[12:13], s[0:1], 16")
    e("s_load_dwordx2 s[16:17], s[0:1], 40")
    e("s_load_dwordx2 s[24:25], s[0:1], 48")
    e("s_load_dwordx2 s[20:21], s[0:1], 56")
    if stamps:
        e("s_memrealtime s[64:65]")
        nst[0] = 1
    e("v_lshrrev_b32 v1, 6, v0")
    e(f"v_and_b32 {V(vL)}, 63, v0")
    e("v_readfirstlane_b32 s3, v1")
    e("s_and_b32 s40, s2, 7")
    e("s_lshr_b32 s41, s2, 3")
    e("s_lshl_b32 s40, s40, 2")
    e("s_lshr_b32 s44, s41, 3")
    e("s_add_u32 s40, s40, s44")
    e("s_and_b32 s41, s41, 7")
    e(f"v_lshlrev_b32 {V(vLin)}, 4, {V(vL)}")
    e(f"s_mul_i32 s45, s40, {HEADB}")
    e("s_lshl_b32 s60, s41, 2")
    e("s_add_u32 s60, s60, s3")
    e(f"s_mul_i32 s42, s60, {4*TILEB}")
    e("s_lshl_b32 s60, s60, 6")
    e(f"s_mul_i32 s43, s3, {SCRB}")
    e(f"s_add_u32 s43, s43, {VIMG}")
    e(f"v_add_u32 {V(vLin4)}, 4096, {V(vLin)}")
    e(f"s_mov_b32 s10, {HEADB}")
    e("s_mov_b32 s11, 0x20000")
    e(f"s_mov_b32 s6, {HEADB}")
    e("s_mov_b32 s7, 0x20000")
    e(f"s_mov_b32 s14, {HEADB}")
    e("s_mov_b32 s15, 0x20000")
    e("s_add_u32 m0, s43, 6144")
    e("s_waitcnt lgkmcnt(0)")
    for b in (8, 4, 12):
        e(f"s_add_u32 s{b}, s{b}, s45")
        e(f"s_addc_u32 s{b+1}, s{b+1}, 0")
    e(f"buffer_load_dwordx4 {V(vLin)}, {SK}, 0 offen {gf} lds", tag="g")
    e("s_add_u32 m0, s43, 7168")
    e(f"buffer_load_dwordx4 {V(vLin)}, {SQ}, 0 offen {gf} lds", tag="g")
    e("s_add_u32 m0, s43, 8192")
    e(f"buffer_load_dwordx4 {V(vLin)}, {SV}, 0 offen {gf} lds", tag="g")

    def load_tile(dst, srd, tag, soff):
        for i in range(6):
            e(f"buffer_load_dwordx4 {dst(4*i,4)}, {V(vLin if i < 4 else vLin4)}, {srd}, {soff} offen offset:{(i*1024)%4096} {lf}", tag=tag)

    def load_k(u):
        e(f"s_add_i32 s44, s42, {(u-2)*TILEB}")
        if u < 2:
            e("s_max_i32 s44, s44, 0")
        if u > 5:
            e(f"s_min_i32 s44, s44, {2032*384}")
        load_tile(Kt[u], SK, f"K{u}", "s44")

    def load_q(t):
        e(f"s_add_i32 s44, s42, {t*TILEB}")
        load_tile(Qt[t], SQ, f"Q{t}", "s44")

    vgroups = [0, 32, 4, 36, 8, 12, 16, 20, 24, 28]

    def load_vg(k):
        g = vgroups[k]
        e(f"s_add_i32 s44, s46, {g*3072}")
        if g < 4:
            e("s_max_i32 s44, s44, 0")
        if g > 32:
            e(f"s_min_i32 s44, s44, {2040*384}")
        e(f"s_add_u32 m0, s47, {g*3072}")
        for m in range(3):
            e(f"buffer_load_dwordx4 {V(vVD+m)}, {SV}, s44 offen offset:{1024*m} {lf} lds", tag="V")

    def consts_vd():
        for m in range(3):
            n, r, c, x = vT, vT + 1, vT + 2, vT + 3
            e(f"v_add_u32 {V(n)}, {64*m}, {V(vL)}")
            e(f"v_mul_u32_u24 {V(r)}, 2731, {V(n)}")
            e(f"v_lshrrev_b32 {V(r)}, 16, {V(r)}")
            e(f"v_mul_u32_u24 {V(c)}, 24, {V(r)}")
            e(f"v_sub_u32 {V(c)}, {V(n)}, {V(c)}")
            e(f"v_and_b32 {V(x)}, 6, {V(r)}")
            e(f"v_xor_b32 {V(x)}, {V(x)}, {V(c)}")
            e(f"v_mul_u32_u24 {V(n)}, 384, {V(r)}")
            e(f"v_lshl_add_u32 {V(vVD+m)}, {V(x)}, 4, {V(n)}")
            if m:
                e(f"v_subrev_u32 {V(vVD+m)}, {1024*m}, {V(vVD+m)}")
            e(f"v_xor_b32 {V(x)}, {V(r)}, {V(c)}")
            e(f"v_lshl_add_u32 {V(x)}, {V(x)}, 4, {V(n)}")
            e(f"v_add_u32 {V(vOR+m)}, s43, {V(x)}")
            e(f"v_and_b32 {V(x)}, 7, {V(c)}")
            e(f"v_xor_b32 {V(x)}, {V(x)}, {V(r)}")
            e(f"v_and_b32 {V(n)}, 3, {V(c)}")
            e(f"v_lshl_add_u32 {V(x)}, {V(n)}, 4, {V(x)}")
            e(f"v_lshrrev_b32 {V(c)}, 2, {V(c)}")
            e(f"v_lshl_add_u32 {V(x)}, {V(c)}, 6, {V(x)}")
            e(f"v_lshlrev_b32 {V(x)}, 4, {V(x)}")
            e(f"v_add_u32 {V(vCW+m)}, s43, {V(x)}")

    def consts_rest():
        j, g, t0, t1, t2 = vJ, vT, vT + 1, vT + 2, vT + 3
        e(f"v_and_b32 {V(j)}, 15, {V(vL)}")
        e(f"v_lshrrev_b32 {V(g)}, 4, {V(vL)}")
        e(f"v_lshlrev_b32 {V(vG4)}, 2, {V(g)}")
        e(f"v_mov_b32 {V(vBig)}, {BIG:#x}")
        for p in range(2):
            e(f"v_or_b32 {V(t0)}, {4*p}, {V(g)}")
            e(f"v_xor_b32 {V(t0)}, {V(t0)}, {V(j)}")
            e(f"v_lshl_add_u32 {V(t0)}, {V(g)}, 4, {V(t0)}")
            e(f"v_lshlrev_b32 {V(t0)}, 4, {V(t0)}")
            e(f"v_add_u32 {V(vCR+p)}, s43, {V(t0)}")
        e(f"v_and_b32 {V(t0)}, 1, {V(j)}")
        e(f"v_mul_u32_u24 {V(t0)}, 384, {V(t0)}")
        e(f"v_lshl_add_u32 {V(t0)}, {V(g)}, 4, {V(t0)}")
        e(f"v_add_u32 {V(vGR)}, s43, {V(t0)}")
        e(f"v_mul_u32_u24 {V(t1)}, 384, {V(j)}")
        e(f"v_and_b32 {V(t0)}, 1, {V(g)}")
        e(f"v_lshl_add_u32 {V(t1)}, {V(t0)}, 3, {V(t1)}")
        e(f"v_add_u32 {V(t1)}, s43, {V(t1)}")
        e(f"v_lshrrev_b32 {V(t2)}, 1, {V(g)}")
        e(f"v_and_b32 {V(t0)}, 7, {V(j)}")
        e(f"v_xor_b32 {V(t2)}, {V(t2)}, {V(t0)}")
        for b in range(4):
            e(f"v_xor_b32 {V(t0)}, {2*b}, {V(t2)}")
            e(f"v_lshl_add_u32 {V(vOW+b)}, {V(t0)}, 4, {V(t1)}")
        e(f"v_lshrrev_b32 {V(t0)}, 2, {V(vL)}")
        e(f"v_mul_u32_u24 {V(t1)}, 384, {V(t0)}")
        e(f"v_and_b32 {V(t2)}, 3, {V(vL)}")
        e(f"v_lshl_add_u32 {V(t1)}, {V(t2)}, 3, {V(t1)}")
        e(f"v_bfe_u32 {V(vT+4)}, {V(vL)}, 3, 2")
        e(f"s_mul_i32 s44, s3, {4*TILEB}")
        for b in range(4):
            e(f"v_xor_b32 {V(t0)}, {b}, {V(vT+4)}")
            e(f"v_lshl_add_u32 {V(t0)}, {V(t0)}, 5, {V(t1)}")
            e(f"v_add_u32 {V(vVR+b)}, s44, {V(t0)}")
        for i in range(3):
            e("s_mul_i32 s44, s3, 3")
            e(f"s_add_u32 s44, s44, {i}")
            e("s_and_b32 s50, s44, 3")
            e("s_lshr_b32 s44, s44, 2")
            e("s_lshl_b32 s44, s44, 7")
            e(f"s_add_u32 s44, s44, {2*TILEB}")
            e(f"v_xor_b32 {V(t0)}, s50, {V(vT+4)}")
            e(f"v_lshl_add_u32 {V(t0)}, {V(t0)}, 5, {V(t1)}")
            e(f"v_add_u32 {V(vGV+i)}, s44, {V(t0)}")
        e(f"v_bfe_u32 {V(t0)}, {V(vL)}, 2, 1")
        e(f"v_mul_u32_u24 {V(t0)}, 384, {V(t0)}")
        e(f"v_lshl_add_u32 {V(t0)}, {V(t2)}, 3, {V(t0)}")
        e(f"v_add_u32 {V(vVG)}, s43, {V(t0)}")
        e(f"v_add_u32 {V(vPW)}, s43, {V(vLin)}")
        e(f"v_add_u32 {V(vPR)}, {VIMG + 6144}, {V(vLin)}")
        e(f"v_lshlrev_b32 {V(t0)}, 4, {V(j)}")
        e(f"v_add_u32 {V(vMX)}, {XCH}, {V(t0)}")
        e("s_mul_i32 s44, s41, 1536")
        e("s_mul_i32 s50, s3, 192")
        e("s_add_u32 s44, s44, s50")
        e(f"v_mul_u32_u24 {V(t0)}, 768, {V(j)}")
        e(f"v_lshl_add_u32 {V(t0)}, {V(g)}, 4, {V(t0)}")
        e(f"v_add_u32 {V(t0)}, s44, {V(t0)}")
        e(f"v_cmp_gt_u32 vcc, 2, {V(j)}")
        e(f"v_cndmask_b32 {V(vWS)}, {V(vBig)}, {V(t0)}, vcc")
        e("s_lshl_b32 s44, s41, 3")
        e("s_add_u32 s44, s44, 12288")
        e(f"v_lshlrev_b32 {V(t0)}, 6, {V(j)}")
        e(f"v_add_u32 {V(t0)}, s44, {V(t0)}")
        e("s_cmp_eq_u32 s3, 0")
        e("s_cselect_b32 s44, 2, 0")
        e(f"v_cmp_gt_u32 vcc, s44, {V(vL)}")
        e(f"v_cndmask_b32 {V(vML)}, {V(vBig)}, {V(t0)}, vcc")
        e("s_cmp_eq_u32 s60, 0")
        e("s_cselect_b32 s44, 48, 0")
        e(f"v_cmp_gt_u32 vcc, s44, {V(vL)}")
        e(f"v_cndmask_b32 {V(vLinM)}, {V(vLin)}, {V(vBig)}, vcc")
        e("s_cmp_eq_u32 s60, 0")
        e("s_cselect_b32 s48, 1, 0")
        e("s_cmp_eq_u32 s60, 1984")
        e("s_cselect_b32 s48, 1, s48")
        e(f"v_cmp_gt_u32 vcc, 16, {V(vL)}")
        e(f"v_cndmask_b32 {B(20)}, {V(vBig)}, 0, vcc")
        e(f"v_mov_b32 {B(22)}, {V(vBig)}")
        e(f"v_mov_b32 {B(21)}, {B(20)}")
        e(f"v_mov_b32 {B(23)}, {V(vBig)}")
        e(f"s_mov_b32 s49, {f2u(SCALE):#x}")
        e("s_add_u32 s16, s16, s45")
        e("s_addc_u32 s17, s17, 0")
        e(f"s_mov_b32 s18, {HEADB}")
        e("s_mov_b32 s19, 0x20000")
        e("s_lshl_b32 s44, s40, 14")
        e("s_add_u32 s20, s20, s44")
        e("s_addc_u32 s21, s21, 0")
        e("s_mov_b32 s22, 16384")
        e("s_mov_b32 s23, 0x20000")
        e("s_mov_b32 s26, 256")
        e("s_mov_b32 s27, 0x20000")

    def bias(t):
        lo, sp, y = vT, vT + 1, vT + 2
        e(f"s_sub_i32 s44, {34-16*t}, s60")
        e(f"s_sub_i32 s50, {2047+32-16*t}, s60")
        e(f"v_max_i32 {V(lo)}, s44, {V(vJ)}")
        e(f"v_add_u32 {V(sp)}, 64, {V(vJ)}")
        e(f"v_min_i32 {V(sp)}, s50, {V(sp)}")
        e(f"v_sub_u32 {V(sp)}, {V(sp)}, {V(lo)}")
        e(f"v_sub_u32 {V(y)}, {V(vG4)}, {V(lo)}")
        for u in range(5):
            for r in range(4):
                e(f"v_add_u32 {V(vT+4+r)}, {16*u+r}, {V(y)}")
            for r in range(4):
                e(f"v_cmp_gt_u32 s[{52+2*r}:{53+2*r}], {V(vT+4+r)}, {V(sp)}")
            for r in range(4):
                e(f"v_cndmask_b32 {B(4*u+r)}, 0, {V(vBig)}, s[{52+2*r}:{53+2*r}]")

    def convert(reg, tag):
        for i in range(6):
            e(f"ds_write_b128 {V(vCW+i%3)}, {reg(4*i,4)} offset:{128*(i//3)}", tag="cw")
        for s in range(6):
            e(f"ds_read_b128 {reg(4*s,4)}, {V(vCR+(s&1))} offset:{1024*s}", tag=f"{tag}{s}")

    def xlane(x, tmp, op):
        for sw in ("v_permlane32_swap_b32", "v_permlane16_swap_b32"):
            e(f"v_mov_b32 {tmp}, {x}")
            e(f"{sw} {x}, {tmp}")
            e(f"{op} {x}, {x}, {tmp}")

    e("s_mul_i32 s46, s41, 98304")
    e("s_mul_i32 s47, s3, 3072")
    e(f"s_add_i32 s46, s46, {-32*384}")
    e("s_add_i32 s46, s46, s47")
    e("s_bitcmp1_b32 s3, 0")
    e("s_cbranch_scc1 L_odd0")
    save = list(e.vm)
    for par, order in ((0, [4, 5, 6, 7, 0, 1, 2, 3]), (1, [0, 1, 2, 3, 4, 5, 6, 7])):
        if par:
            e("s_branch L_join0")
            e.label("L_odd0")
            e.vm[:] = save
        for k, u in enumerate(order):
            load_k(u)
            for q in range(6):
                e.vm[-1 - q] = f"K@{k}"
    e.label("L_join0")
    consts_vd()
    for k in range(4):
        load_vg(k)
    consts_rest()
    bias(0)
    stamp()
    e.wait(vm="g")
    for s in range(6):
        e(f"ds_read_b128 {KG(4*s,4)}, {V(vGR)} offset:{6144+64*s}", tag="kg")
    for s in range(6):
        e(f"ds_read_b128 {QG(4*s,4)}, {V(vGR)} offset:{7168+64*s}", tag="qg")
    later = [lambda k=k: load_vg(k) for k in range(4, 10)]
    nq_early = 4 - hold
    later_q = [lambda t=t: load_q(t) for t in range(nq_early)]
    e("s_bitcmp1_b32 s3, 0")
    e("s_cbranch_scc1 L_odd1")
    save = list(e.vm); savel = list(e.lg)
    for par, order in ((0, [4, 5, 6, 7, 0, 1, 2, 3]), (1, [0, 1, 2, 3, 4, 5, 6, 7])):
        if par:
            e("s_branch L_join1")
            e.label("L_odd1")
            e.vm[:] = save; e.lg[:] = savel
        todo = list(later); todoq = list(later_q)
        for k, u in enumerate(order):
            e.wait(vm=f"K@{k}")
            if todo:
                todo.pop(0)(); todo.pop(0)()
            elif todoq:
                todoq.pop(0)()
            convert(Kt[u], "kc")
        assert not todo and not todoq
    e.label("L_join1")
    stamp()
    e.wait(lg="all")
    for s in range(6):
        for u in range(4):
            c = "0" if s == 0 else S(4*u, 4)
            e(f"v_mfma_f32_16x16x32_bf16 {S(4*u,4)}, {Kt[2+u](4*s,4)}, {QG(4*s,4)}, {c}")
    m, tmp, l = V(vT), V(vT + 1), V(vT + 2)
    e(f"v_mov_b32 {V(vT+3)}, 0")
    e(f"v_mov_b32 {V(vT+4)}, {XCH+512}")
    e("s_lshl_b32 s51, s3, 2")
    e(f"v_add_u32 {V(vT+5)}, s51, {V(vMX)}")
    e(f"v_max3_f32 {m}, {S(0)}, {S(1)}, {S(2)}")
    for k in range(3, 15, 2):
        e(f"v_max3_f32 {m}, {m}, {S(k)}, {S(k+1)}")
    e(f"v_max_f32 {m}, {m}, {S(15)}")
    xlane(m, tmp, "v_max_f32")
    e(f"ds_write_b32 {V(vT+5)}, {m}")
    e(f"ds_write_b32 {V(vT+4)}, {V(vT+3)}")
    e.wait(lg="all")
    e("s_barrier")
    e(f"ds_read_b128 {V(vT+8,4)}, {V(vMX)}", tag="mx")
    e.wait(lg="all")
    e(f"v_max3_f32 {m}, {V(vT+8)}, {V(vT+9)}, {V(vT+10)}")
    e(f"v_max_f32 {m}, {m}, {V(vT+11)}")
    e(f"v_mul_f32 {m}, s49, {m}")
    for k in range(16):
        e(f"v_fma_f32 {S(k)}, {S(k)}, s49, -{m}")
    for k in range(16):
        e(f"v_exp_f32 {S(k)}, {S(k)}")
    e(f"v_add_f32 {l}, {S(0)}, {S(1)}")
    for k in range(2, 16):
        e(f"v_add_f32 {l}, {l}, {S(k)}")
    for k in range(8):
        e(f"v_cvt_pk_bf16_f32 {P(k)}, {S(2*k)}, {S(2*k+1)}")
    xlane(l, tmp, "v_add_f32")
    e(f"ds_write_b128 {V(vPW)}, {P(0,4)} offset:6144")
    e(f"ds_write_b128 {V(vPW)}, {P(4,4)} offset:7168")
    e(f"ds_write_b32 {V(vT+5)}, {l} offset:256")
    e(f"v_mov_b32 {V(vT+6)}, {m}")
    stamp()
    e.wait(vm="V", lg="all")
    e("s_barrier")
    stamp()
    PG = R("v", 108); OG = R("v", 140)

    def gv_reads(ks):
        F = F012[ks % 3]
        if ks == 4:
            for i in range(3):
                e(f"v_add_u32 {V(vGV+i)}, {8*TILEB}, {V(vGV+i)}")
        base = (ks % 4) * 2 * TILEB
        for i in range(3):
            e(f"ds_read_b64_tr_b16 {F(4*i,2)}, {V(vGV+i)} offset:{base}", tag=f"gv{ks}")
            e(f"ds_read_b64_tr_b16 {F(4*i+2,2)}, {V(vGV+i)} offset:{base+TILEB}", tag=f"gv{ks}")
    for ks in range(8):
        e(f"ds_read_b128 {PG(4*ks,4)}, {V(vPR)} offset:{(ks//2)*SCRB + (ks%2)*1024}", tag="pg")
    e(f"ds_read_b128 {V(vT+8,4)}, {V(vMX)} offset:256", tag="lx")
    gv_reads(0); gv_reads(1)
    for ks in range(8):
        if ks + 2 < 8:
            gv_reads(ks + 2)
        e.wait(lg=f"gv{ks}")
        F = F012[ks % 3]
        for i in range(3):
            c = "0" if ks == 0 else OG(4*i, 4)
            e(f"v_mfma_f32_16x16x32_bf16 {OG(4*i,4)}, {F(4*i,4)}, {PG(4*ks,4)}, {c}")
    e(f"v_add_f32 {V(vT+7)}, {V(vT+8)}, {V(vT+9)}")
    e(f"v_add_f32 {V(vT+7)}, {V(vT+7)}, {V(vT+10)}")
    e(f"v_add_f32 {V(vT+7)}, {V(vT+7)}, {V(vT+11)}")
    e(f"buffer_store_dwordx2 {V(vT+6,2)}, {V(vML)}, {SW}, 0 offen sc1", tag="part")
    for i in range(3):
        e(f"buffer_store_dwordx4 {OG(4*i,4)}, {V(vWS)}, {SW}, 0 offen offset:{64*i} sc1", tag="part")
    for t in range(nq_early, 4):
        load_q(t)
    stamp()
    sig_tile = max(nq_early, 1) if hold else 3
    chk_tile = 3

    def v_reads(t, T, F):
        a, b = T >> 2, T & 3
        for ks in range(3):
            for h in range(2):
                u = 2 * ks + h
                if u < 5:
                    e(f"ds_read_b64_tr_b16 {F(4*ks+2*h,2)}, {V(vVR+b)} offset:{128*a + TILEB*(t+u)}", tag=f"v{T}")
                else:
                    e(f"ds_read_b64_tr_b16 {F(4*ks+2*h,2)}, {V(vVG)} offset:{8192+32*T}", tag=f"v{T}")

    CB = R("a", 0)
    for t in range(4):
        e.comment(f"---- tile {t}")
        slack = 1 if t > sig_tile else 0
        if t == sig_tile and not hold:
            e.wait(vm=[f"Q{t}", "part"])
        else:
            e.wait(vm=f"Q{t}")
        convert(Qt[t], "q")
        if t == sig_tile:
            e(f"v_mov_b32 {V(vT+3)}, 1")
            e(f"v_mov_b32 {V(vT+4)}, {XCH+512}")
            e("s_mov_b64 exec, 1")
            e(f"ds_add_rtn_u32 {V(vPR)}, {V(vT+4)}, {V(vT+3)}", tag="cnt")
            e("s_mov_b64 exec, -1")
        if t > 0:
            e("s_cmp_eq_u32 s48, 0")
            e(f"s_cbranch_scc1 L_nobias{t}")
            bias(t)
            e.label(f"L_nobias{t}")
        if t == chk_tile and sig_tile < chk_tile:
            check_arrival(e, CB, SW, vL, vT, "O2")
        Fb = F012 + [R(Kt[t].f, Kt[t].b), R(Kt[t].f, Kt[t].b + 12), R(Qt[t].f, Qt[t].b), R(Qt[t].f, Qt[t].b + 12)]
        pre = []
        for T in range(3):
            pre.append((T, Fb[T]))
        for s in range(6):
            e.wait(lg=f"q{s}")
            for u in range(6):
                a_op = Kt[t + u](4*s, 4) if u < 5 else KG(4*s, 4)
                c = B(4*u, 4) if s == 0 else S(4*u, 4)
                e(f"v_mfma_f32_16x16x32_bf16 {S(4*u,4)}, {a_op}, {Qt[t](4*s,4)}, {c}")
            if s == 5 and t == sig_tile:
                e.wait(lg="cnt")
                e(f"v_readfirstlane_b32 s61, {V(vPR)}")
                e("s_cmp_lg_u32 s61, 3")
                e("s_cbranch_scc1 L_nosig")
                e("s_lshl_b32 s44, s40, 2")
                e(f"v_mov_b32 {V(vT+4)}, s44")
                e(f"v_mov_b32 {V(vPW)}, 1")
                e("s_mov_b64 exec, 1")
                sv = list(e.vm)
                e(f"buffer_atomic_add {V(vPW)}, {V(vT+4)}, {SD}, 0 offen sc0", tag="atom")
                e.vm[:] = sv
                e("s_mov_b64 exec, -1")
                e.label("L_nosig")
            if s in (1, 3, 5):
                T = s // 2
                v_reads(t, T, Fb[T])
        e(f"v_max3_f32 {m}, {S(0)}, {S(1)}, {S(2)}")
        e(f"v_max3_f32 {l}, {S(3)}, {S(4)}, {S(5)}")
        for k in range(6, 22, 4):
            e(f"v_max3_f32 {m}, {m}, {S(k)}, {S(k+1)}")
            e(f"v_max3_f32 {l}, {l}, {S(k+2)}, {S(k+3)}")
        e(f"v_max3_f32 {m}, {m}, {S(22)}, {S(23)}")
        e(f"v_max_f32 {m}, {m}, {l}")
        xlane(m, tmp, "v_max_f32")
        e(f"v_mul_f32 {m}, s49, {m}")
        v_reads(t, 3, Fb[3])
        for k in range(22):
            e(f"v_fma_f32 {S(k)}, {S(k)}, s49, -{m}")
        v_reads(t, 4, Fb[4])
        for k in range(22):
            e(f"v_exp_f32 {S(k)}, {S(k)}")
        v_reads(t, 5, Fb[5])
        e(f"v_add_f32 {l}, {S(0)}, {S(1)}")
        e(f"v_add_f32 {V(vT+3)}, {S(2)}, {S(3)}")
        for k in range(4, 22, 2):
            e(f"v_add_f32 {l}, {l}, {S(k)}")
            e(f"v_add_f32 {V(vT+3)}, {V(vT+3)}, {S(k+1)}")
        e(f"v_add_f32 {l}, {l}, {V(vT+3)}")
        xlane(l, tmp, "v_add_f32")
        e(f"v_rcp_f32 {l}, {l}")
        v_reads(t, 6, Fb[6])
        for k in range(22):
            e(f"v_mul_f32 {S(k)}, {S(k)}, {l}")
        for k in range(11):
            e(f"v_cvt_pk_bf16_f32 {P(k)}, {S(2*k)}, {S(2*k+1)}")
        e(f"v_mov_b32 {P(11)}, 0")
        def pack(T):
            a, b = T >> 2, T & 3
            e(f"v_cvt_pk_bf16_f32 {O(4*T)}, {O(4*T)}, {O(4*T+1)}")
            e(f"v_cvt_pk_bf16_f32 {O(4*T+1)}, {O(4*T+2)}, {O(4*T+3)}")
            e(f"ds_write_b64 {V(vOW+b)}, {O(4*T,2)} offset:{128*a}", tag="ow")
        for T in range(12):
            F = Fb[T % 7]
            e.wait(lg=f"v{T}")
            for ks in range(3):
                c = "0" if ks == 0 else O(4*T, 4)
                e(f"v_mfma_f32_16x16x32_bf16 {O(4*T,4)}, {F(4*ks,4)}, {P(4*ks,4)}, {c}")
            if T + 7 < 12:
                v_reads(t, T + 7, F)
            if T >= 3:
                pack(T - 3)
        for T in range(9, 12):
            pack(T)
        for i in range(6):
            e(f"ds_read_b128 {O(24+4*i,4)}, {V(vOR+i%3)} offset:{3072*(i//3)}", tag=f"or{i}")
        e(f"s_add_i32 s44, s42, {t*TILEB}")
        for i in range(6):
            e.wait(lg=f"or{i}")
            va = vLinM if (t == 0 and i == 0) else (vLin if i < 4 else vLin4)
            e(f"buffer_store_dwordx4 {O(24+4*i,4)}, {V(va)}, {SO}, s44 offen offset:{(i*1024)%4096} {sf}", tag=f"O{t}")
        stamp()
    if sig_tile == chk_tile:
        check_arrival(e, CB, SW, vL, vT, "O3")
    e("s_cmp_lg_u32 s61, 7")
    e("s_cbranch_scc1 L_fin")
    e("s_waitcnt vmcnt(0)" if sig_tile == chk_tile else "s_waitcnt vmcnt(6)")
    W = R("v", 72)
    for k in range(16):
        e(f"v_accvgpr_read_b32 {W(k)}, {CB(48+k)}")
    e(f"v_max3_f32 {m}, {W(0)}, {W(2)}, {W(4)}")
    e(f"v_max3_f32 {m}, {m}, {W(6)}, {W(8)}")
    e(f"v_max3_f32 {m}, {m}, {W(10)}, {W(12)}")
    e(f"v_max_f32 {m}, {m}, {W(14)}")
    for s in range(8):
        e(f"v_sub_f32 {W(2*s)}, {W(2*s)}, {m}")
    for s in range(8):
        e(f"v_exp_f32 {W(2*s)}, {W(2*s)}")
    e(f"v_mul_f32 {l}, {W(0)}, {W(1)}")
    for s in range(1, 8):
        e(f"v_fmac_f32 {l}, {W(2*s)}, {W(2*s+1)}")
    e(f"v_rcp_f32 {l}, {l}")
    X = R("v", 96); Y = R("v", 104)
    for s in range(8):
        for k in range(6):
            e(f"v_accvgpr_read_b32 {Y(k)}, {CB(6*s+k)}")
        for k in range(6):
            if s == 0:
                e(f"v_mul_f32 {X(k)}, {W(0)}, {Y(k)}")
            else:
                e(f"v_fmac_f32 {X(k)}, {W(2*s)}, {Y(k)}")
    for k in range(6):
        e(f"v_mul_f32 {X(k)}, {X(k)}, {l}")
    for k in range(3):
        e(f"v_cvt_pk_bf16_f32 {X(k)}, {X(2*k)}, {X(2*k+1)}")
    e(f"v_mul_u32_u24 {tmp}, 12, {V(vL)}")
    e(f"buffer_store_dwordx3 {X(0,3)}, {tmp}, {SO}, 0 offen")
    e.label("L_fin")
    if stamps:
        stamp()
        e("s_waitcnt vmcnt(0)")
        stamp()
        e("s_load_dwordx2 s[20:21], s[0:1], 56")
        e("s_waitcnt lgkmcnt(0)")
        e("s_mov_b32 s22, 0x1000000")
        e("s_lshl_b32 s44, s2, 2")
        e("s_add_u32 s44, s44, s3")
        e("s_lshl_b32 s44, s44, 6")
        e("s_add_u32 s44, s44, 0x100000")
        e(f"v_mov_b32 {V(vT+1)}, 0")
        for k in range(nst[0]):
            e(f"v_mov_b32 {V(vT)}, s{64+2*k}")
            e(f"buffer_store_dword {V(vT)}, {V(vT+1)}, {SW}, s44 offen offset:{4*k}")
            e("s_nop 1")
    e.label("L_end")
    e("s_endpgm")
    return HEADER.format(lds=LDS_TOTAL, kn=KN) + e.finish() + FOOTER.format(kn=KN)


def check_arrival(e, CB, SW, vL, vT, after):
    e("s_cmp_lg_u32 s61, 3")
    e("s_cbranch_scc1 L_notlast")
    cnt = sum(1 for x in e.vm if x == after)
    e(f"s_waitcnt vmcnt({cnt})")
    e("v_readfirstlane_b32 s61, v28")
    e("s_cmp_lg_u32 s61, 7")
    e("s_cbranch_scc1 L_notlast")
    sv = list(e.vm)
    e(f"v_lshrrev_b32 {V(vT+4)}, 5, {V(vL)}")
    e(f"v_and_b32 {V(vT+5)}, 31, {V(vL)}")
    e(f"v_mul_u32_u24 {V(vT+5)}, 24, {V(vT+5)}")
    e(f"v_mul_u32_u24 {V(vT+6)}, 768, {V(vT+4)}")
    e(f"v_add_u32 {V(vT+5)}, {V(vT+5)}, {V(vT+6)}")
    e(f"v_lshlrev_b32 {V(vT+4)}, 6, {V(vT+4)}")
    e("s_mov_b32 s50, 12288")
    for k in range(4):
        e(f"buffer_load_dwordx4 {CB(48+4*k,4)}, {V(vT+4)}, {SW}, s50 offen offset:{16*k} sc1")
    for s in range(8):
        e(f"s_mov_b32 s50, {s*1536}")
        e(f"buffer_load_dwordx4 {CB(6*s,4)}, {V(vT+5)}, {SW}, s50 offen sc1")
        e(f"buffer_load_dwordx2 {CB(6*s+4,2)}, {V(vT+5)}, {SW}, s50 offen offset:16 sc1")
    e.vm[:] = sv
    e.label("L_notlast")


if __name__ == "__main__":
    import ast
    out = sys.argv[1]
    kw = {}
    for a in sys.argv[2:]:
        k, v = a.split("=", 1)
        try:
            kw[k] = ast.literal_eval(v)
        except Exception:
            kw[k] = v
    open(out, "w").write(gen(**kw))
```

```python
import sys, struct
from asmdsl import Asm

KN = "standalone__global_local_windowed_global_tokens__prompt_kernel"
HEADB = 786432
TILEB = 6144
VIMG = 320 * 384
SCRB = 9216
XCH = VIMG + 4 * SCRB
LDS_TOTAL = XCH + 1024
SCALE = 192 ** -0.5 * 1.4426950408889634
BIG = 0xF1000000


def f2u(x):
    return struct.unpack("<I", struct.pack("<f", x))[0]


HEADER = """; Windowed (|i-j|<=32) + 2 global tokens attention, B=1 H=32 S=2048 D=192, bf16.
; @launch grid=(256,1,1) block=(256,1,1) lds={lds}
.amdgcn_target "amdgcn-amd-amdhsa--gfx950"
.text
.globl {kn}
.p2align 8
.type {kn},@function
{kn}:
"""
FOOTER = """
.section .rodata,"a"
.p2align 6
.amdhsa_kernel {kn}
  .amdhsa_next_free_vgpr 512
  .amdhsa_next_free_sgpr 96
  .amdhsa_accum_offset 256
  .amdhsa_group_segment_fixed_size 0
  .amdhsa_kernarg_size 64
  .amdhsa_user_sgpr_count 2
  .amdhsa_user_sgpr_kernarg_segment_ptr 1
  .amdhsa_system_sgpr_workgroup_id_x 1
  .amdhsa_float_denorm_mode_32 3
.end_amdhsa_kernel
"""


def V(i, n=1):
    return f"v{i}" if n == 1 else f"v[{i}:{i+n-1}]"


def A(i, n=1):
    return f"a{i}" if n == 1 else f"a[{i}:{i+n-1}]"


class R:
    def __init__(self, f, b):
        self.f, self.b = f, b

    def __call__(self, off=0, n=1):
        i = self.b + off
        return f"{self.f}{i}" if n == 1 else f"{self.f}[{i}:{i+n-1}]"


def gen(lf="nt", sf="nt", hold=2, stamps=False, gf="", amp=None):
    e = Asm()
    SQ, SK, SV, SO, SW, SD = "s[4:7]", "s[8:11]", "s[12:15]", "s[16:19]", "s[20:23]", "s[24:27]"
    vL, vLin, vLin4, vLinM = 0, 1, 2, 3
    vCW, vCR, vOW, vOR, vVR, vVG = 4, 7, 9, 13, 16, 20
    vVD, vGR, vGV, vPW, vPR, vMX, vWS, vML = 21, 24, 25, 28, 29, 30, 31, 32
    vJ, vG4, vBig = 33, 34, 35
    vT = 36
    B = R("v", 48); S = R("v", 72); P = R("v", 96); O = R("v", 108); KG = R("v", 156)
    Kt = [R("a", 24 * u) for u in range(8)]
    Qt = [R("a", 192), R("a", 216), R("v", 180), R("v", 204)]
    F012 = [R("v", 228), R("v", 240), R("a", 240)]
    QG = R("v", 108)
    nst = [0]

    def stamp():
        if stamps:
            k = nst[0]
            e(f"s_memrealtime s[{64+2*k}:{65+2*k}]")
            e("s_waitcnt lgkmcnt(0)")
            e.lg.clear()
            nst[0] += 1

    e("s_cmp_ge_u32 s2, 256")
    e("s_cbranch_scc1 L_end")
    e("s_load_dwordx2 s[8:9], s[0:1], 8")
    e("s_load_dwordx2 s[4:5], s[0:1], 0")
    e("s_load_dwordx2 s[12:13], s[0:1], 16")
    e("s_load_dwordx2 s[16:17], s[0:1], 40")
    e("s_load_dwordx2 s[24:25], s[0:1], 48")
    e("s_load_dwordx2 s[20:21], s[0:1], 56")
    if stamps:
        e("s_memrealtime s[64:65]")
        nst[0] = 1
    e("v_lshrrev_b32 v1, 6, v0")
    e(f"v_and_b32 {V(vL)}, 63, v0")
    e("v_readfirstlane_b32 s3, v1")
    e("s_and_b32 s40, s2, 7")
    e("s_lshr_b32 s41, s2, 3")
    e("s_lshl_b32 s40, s40, 2")
    e("s_lshr_b32 s44, s41, 3")
    e("s_add_u32 s40, s40, s44")
    e("s_and_b32 s41, s41, 7")
    e(f"v_lshlrev_b32 {V(vLin)}, 4, {V(vL)}")
    e(f"s_mul_i32 s45, s40, {HEADB}")
    e("s_lshl_b32 s60, s41, 2")
    e("s_add_u32 s60, s60, s3")
    e(f"s_mul_i32 s42, s60, {4*TILEB}")
    e("s_lshl_b32 s60, s60, 6")
    e(f"s_mul_i32 s43, s3, {SCRB}")
    e(f"s_add_u32 s43, s43, {VIMG}")
    e(f"v_add_u32 {V(vLin4)}, 4096, {V(vLin)}")
    e(f"s_mov_b32 s10, {HEADB}")
    e("s_mov_b32 s11, 0x20000")
    e(f"s_mov_b32 s6, {HEADB}")
    e("s_mov_b32 s7, 0x20000")
    e(f"s_mov_b32 s14, {HEADB}")
    e("s_mov_b32 s15, 0x20000")
    e("s_add_u32 m0, s43, 6144")
    e("s_waitcnt lgkmcnt(0)")
    for b in (8, 4, 12):
        e(f"s_add_u32 s{b}, s{b}, s45")
        e(f"s_addc_u32 s{b+1}, s{b+1}, 0")
    e(f"buffer_load_dwordx4 {V(vLin)}, {SK}, 0 offen {gf} lds", tag="g")
    e("s_add_u32 m0, s43, 7168")
    e(f"buffer_load_dwordx4 {V(vLin)}, {SQ}, 0 offen {gf} lds", tag="g")
    e("s_add_u32 m0, s43, 8192")
    e(f"buffer_load_dwordx4 {V(vLin)}, {SV}, 0 offen {gf} lds", tag="g")

    def load_tile(dst, srd, tag, soff):
        for i in range(6):
            e(f"buffer_load_dwordx4 {dst(4*i,4)}, {V(vLin if i < 4 else vLin4)}, {srd}, {soff} offen offset:{(i*1024)%4096} {lf}", tag=tag)

    def load_k(u):
        e(f"s_add_i32 s44, s42, {(u-2)*TILEB}")
        if u < 2:
            e("s_max_i32 s44, s44, 0")
        if u > 5:
            e(f"s_min_i32 s44, s44, {2032*384}")
        load_tile(Kt[u], SK, f"K{u}", "s44")

    def load_q(t):
        e(f"s_add_i32 s44, s42, {t*TILEB}")
        load_tile(Qt[t], SQ, f"Q{t}", "s44")

    vgroups = [0, 32, 4, 36, 8, 12, 16, 20, 24, 28]

    def load_vg(k):
        g = vgroups[k]
        e(f"s_add_i32 s44, s46, {g*3072}")
        if g < 4:
            e("s_max_i32 s44, s44, 0")
        if g > 32:
            e(f"s_min_i32 s44, s44, {2040*384}")
        e(f"s_add_u32 m0, s47, {g*3072}")
        for m in range(3):
            e(f"buffer_load_dwordx4 {V(vVD+m)}, {SV}, s44 offen offset:{1024*m} {lf} lds", tag="V")

    def consts_vd():
        for m in range(3):
            n, r, c, x = vT, vT + 1, vT + 2, vT + 3
            e(f"v_add_u32 {V(n)}, {64*m}, {V(vL)}")
            e(f"v_mul_u32_u24 {V(r)}, 2731, {V(n)}")
            e(f"v_lshrrev_b32 {V(r)}, 16, {V(r)}")
            e(f"v_mul_u32_u24 {V(c)}, 24, {V(r)}")
            e(f"v_sub_u32 {V(c)}, {V(n)}, {V(c)}")
            e(f"v_and_b32 {V(x)}, 6, {V(r)}")
            e(f"v_xor_b32 {V(x)}, {V(x)}, {V(c)}")
            e(f"v_mul_u32_u24 {V(n)}, 384, {V(r)}")
            e(f"v_lshl_add_u32 {V(vVD+m)}, {V(x)}, 4, {V(n)}")
            if m:
                e(f"v_subrev_u32 {V(vVD+m)}, {1024*m}, {V(vVD+m)}")
            e(f"v_xor_b32 {V(x)}, {V(r)}, {V(c)}")
            e(f"v_lshl_add_u32 {V(x)}, {V(x)}, 4, {V(n)}")
            e(f"v_add_u32 {V(vOR+m)}, s43, {V(x)}")
            e(f"v_and_b32 {V(x)}, 7, {V(c)}")
            e(f"v_xor_b32 {V(x)}, {V(x)}, {V(r)}")
            e(f"v_and_b32 {V(n)}, 3, {V(c)}")
            e(f"v_lshl_add_u32 {V(x)}, {V(n)}, 4, {V(x)}")
            e(f"v_lshrrev_b32 {V(c)}, 2, {V(c)}")
            e(f"v_lshl_add_u32 {V(x)}, {V(c)}, 6, {V(x)}")
            e(f"v_lshlrev_b32 {V(x)}, 4, {V(x)}")
            e(f"v_add_u32 {V(vCW+m)}, s43, {V(x)}")

    def consts_rest():
        j, g, t0, t1, t2 = vJ, vT, vT + 1, vT + 2, vT + 3
        e(f"v_and_b32 {V(j)}, 15, {V(vL)}")
        e(f"v_lshrrev_b32 {V(g)}, 4, {V(vL)}")
        e(f"v_lshlrev_b32 {V(vG4)}, 2, {V(g)}")
        e(f"v_mov_b32 {V(vBig)}, {BIG:#x}")
        for p in range(2):
            e(f"v_or_b32 {V(t0)}, {4*p}, {V(g)}")
            e(f"v_xor_b32 {V(t0)}, {V(t0)}, {V(j)}")
            e(f"v_lshl_add_u32 {V(t0)}, {V(g)}, 4, {V(t0)}")
            e(f"v_lshlrev_b32 {V(t0)}, 4, {V(t0)}")
            e(f"v_add_u32 {V(vCR+p)}, s43, {V(t0)}")
        e(f"v_and_b32 {V(t0)}, 1, {V(j)}")
        e(f"v_mul_u32_u24 {V(t0)}, 384, {V(t0)}")
        e(f"v_lshl_add_u32 {V(t0)}, {V(g)}, 4, {V(t0)}")
        e(f"v_add_u32 {V(vGR)}, s43, {V(t0)}")
        e(f"v_mul_u32_u24 {V(t1)}, 384, {V(j)}")
        e(f"v_and_b32 {V(t0)}, 1, {V(g)}")
        e(f"v_lshl_add_u32 {V(t1)}, {V(t0)}, 3, {V(t1)}")
        e(f"v_add_u32 {V(t1)}, s43, {V(t1)}")
        e(f"v_lshrrev_b32 {V(t2)}, 1, {V(g)}")
        e(f"v_and_b32 {V(t0)}, 7, {V(j)}")
        e(f"v_xor_b32 {V(t2)}, {V(t2)}, {V(t0)}")
        for b in range(4):
            e(f"v_xor_b32 {V(t0)}, {2*b}, {V(t2)}")
            e(f"v_lshl_add_u32 {V(vOW+b)}, {V(t0)}, 4, {V(t1)}")
        e(f"v_lshrrev_b32 {V(t0)}, 2, {V(vL)}")
        e(f"v_mul_u32_u24 {V(t1)}, 384, {V(t0)}")
        e(f"v_and_b32 {V(t2)}, 3, {V(vL)}")
        e(f"v_lshl_add_u32 {V(t1)}, {V(t2)}, 3, {V(t1)}")
        e(f"v_bfe_u32 {V(vT+4)}, {V(vL)}, 3, 2")
        e(f"s_mul_i32 s44, s3, {4*TILEB}")
        for b in range(4):
            e(f"v_xor_b32 {V(t0)}, {b}, {V(vT+4)}")
            e(f"v_lshl_add_u32 {V(t0)}, {V(t0)}, 5, {V(t1)}")
            e(f"v_add_u32 {V(vVR+b)}, s44, {V(t0)}")
        for i in range(3):
            e("s_mul_i32 s44, s3, 3")
            e(f"s_add_u32 s44, s44, {i}")
            e("s_and_b32 s50, s44, 3")
            e("s_lshr_b32 s44, s44, 2")
            e("s_lshl_b32 s44, s44, 7")
            e(f"s_add_u32 s44, s44, {2*TILEB}")
            e(f"v_xor_b32 {V(t0)}, s50, {V(vT+4)}")
            e(f"v_lshl_add_u32 {V(t0)}, {V(t0)}, 5, {V(t1)}")
            e(f"v_add_u32 {V(vGV+i)}, s44, {V(t0)}")
        e(f"v_bfe_u32 {V(t0)}, {V(vL)}, 2, 1")
        e(f"v_mul_u32_u24 {V(t0)}, 384, {V(t0)}")
        e(f"v_lshl_add_u32 {V(t0)}, {V(t2)}, 3, {V(t0)}")
        e(f"v_add_u32 {V(vVG)}, s43, {V(t0)}")
        e(f"v_add_u32 {V(vPW)}, s43, {V(vLin)}")
        e(f"v_add_u32 {V(vPR)}, {VIMG + 6144}, {V(vLin)}")
        e(f"v_lshlrev_b32 {V(t0)}, 4, {V(j)}")
        e(f"v_add_u32 {V(vMX)}, {XCH}, {V(t0)}")
        e("s_mul_i32 s44, s41, 1536")
        e("s_mul_i32 s50, s3, 192")
        e("s_add_u32 s44, s44, s50")
        e(f"v_mul_u32_u24 {V(t0)}, 768, {V(j)}")
        e(f"v_lshl_add_u32 {V(t0)}, {V(g)}, 4, {V(t0)}")
        e(f"v_add_u32 {V(t0)}, s44, {V(t0)}")
        e(f"v_cmp_gt_u32 vcc, 2, {V(j)}")
        e(f"v_cndmask_b32 {V(vWS)}, {V(vBig)}, {V(t0)}, vcc")
        e("s_lshl_b32 s44, s41, 3")
        e("s_add_u32 s44, s44, 12288")
        e(f"v_lshlrev_b32 {V(t0)}, 6, {V(j)}")
        e(f"v_add_u32 {V(t0)}, s44, {V(t0)}")
        e("s_cmp_eq_u32 s3, 0")
        e("s_cselect_b32 s44, 2, 0")
        e(f"v_cmp_gt_u32 vcc, s44, {V(vL)}")
        e(f"v_cndmask_b32 {V(vML)}, {V(vBig)}, {V(t0)}, vcc")
        e("s_cmp_eq_u32 s60, 0")
        e("s_cselect_b32 s44, 48, 0")
        e(f"v_cmp_gt_u32 vcc, s44, {V(vL)}")
        e(f"v_cndmask_b32 {V(vLinM)}, {V(vLin)}, {V(vBig)}, vcc")
        e("s_cmp_eq_u32 s60, 0")
        e("s_cselect_b32 s48, 1, 0")
        e("s_cmp_eq_u32 s60, 1984")
        e("s_cselect_b32 s48, 1, s48")
        e(f"v_cmp_gt_u32 vcc, 16, {V(vL)}")
        e(f"v_cndmask_b32 {B(20)}, {V(vBig)}, 0, vcc")
        e(f"v_mov_b32 {B(22)}, {V(vBig)}")
        e(f"v_mov_b32 {B(21)}, {B(20)}")
        e(f"v_mov_b32 {B(23)}, {V(vBig)}")
        e(f"s_mov_b32 s49, {f2u(SCALE):#x}")
        e("s_add_u32 s16, s16, s45")
        e("s_addc_u32 s17, s17, 0")
        e(f"s_mov_b32 s18, {HEADB}")
        e("s_mov_b32 s19, 0x20000")
        e("s_lshl_b32 s44, s40, 14")
        e("s_add_u32 s20, s20, s44")
        e("s_addc_u32 s21, s21, 0")
        e("s_mov_b32 s22, 16384")
        e("s_mov_b32 s23, 0x20000")
        e("s_mov_b32 s26, 256")
        e("s_mov_b32 s27, 0x20000")

    def bias(t):
        lo, sp, y = vT, vT + 1, vT + 2
        e(f"s_sub_i32 s44, {34-16*t}, s60")
        e(f"s_sub_i32 s50, {2047+32-16*t}, s60")
        e(f"v_max_i32 {V(lo)}, s44, {V(vJ)}")
        e(f"v_add_u32 {V(sp)}, 64, {V(vJ)}")
        e(f"v_min_i32 {V(sp)}, s50, {V(sp)}")
        e(f"v_sub_u32 {V(sp)}, {V(sp)}, {V(lo)}")
        e(f"v_sub_u32 {V(y)}, {V(vG4)}, {V(lo)}")
        for u in range(5):
            for r in range(4):
                e(f"v_add_u32 {V(vT+4+r)}, {16*u+r}, {V(y)}")
            for r in range(4):
                e(f"v_cmp_gt_u32 s[{52+2*r}:{53+2*r}], {V(vT+4+r)}, {V(sp)}")
            for r in range(4):
                e(f"v_cndmask_b32 {B(4*u+r)}, 0, {V(vBig)}, s[{52+2*r}:{53+2*r}]")

    def convert(reg, tag):
        for i in range(6):
            e(f"ds_write_b128 {V(vCW+i%3)}, {reg(4*i,4)} offset:{128*(i//3)}", tag="cw")
        for s in range(6):
            e(f"ds_read_b128 {reg(4*s,4)}, {V(vCR+(s&1))} offset:{1024*s}", tag=f"{tag}{s}")

    def xlane(x, tmp, op):
        for sw in ("v_permlane32_swap_b32", "v_permlane16_swap_b32"):
            e(f"v_mov_b32 {tmp}, {x}")
            e(f"{sw} {x}, {tmp}")
            e(f"{op} {x}, {x}, {tmp}")

    e("s_mul_i32 s46, s41, 98304")
    e("s_mul_i32 s47, s3, 3072")
    e(f"s_add_i32 s46, s46, {-32*384}")
    e("s_add_i32 s46, s46, s47")
    e("s_bitcmp1_b32 s3, 0")
    e("s_cbranch_scc1 L_odd0")
    save = list(e.vm)
    for par, order in ((0, [4, 5, 6, 7, 0, 1, 2, 3]), (1, [0, 1, 2, 3, 4, 5, 6, 7])):
        if par:
            e("s_branch L_join0")
            e.label("L_odd0")
            e.vm[:] = save
        for k, u in enumerate(order):
            load_k(u)
            for q in range(6):
                e.vm[-1 - q] = f"K@{k}"
    e.label("L_join0")
    consts_vd()
    for k in range(4):
        load_vg(k)
    consts_rest()
    bias(0)
    stamp()
    e.wait(vm="g")
    for s in range(6):
        e(f"ds_read_b128 {KG(4*s,4)}, {V(vGR)} offset:{6144+64*s}", tag="kg")
    for s in range(6):
        e(f"ds_read_b128 {QG(4*s,4)}, {V(vGR)} offset:{7168+64*s}", tag="qg")
    later = [lambda k=k: load_vg(k) for k in range(4, 10)]
    nq_early = 4 - hold
    later_q = [lambda t=t: load_q(t) for t in range(nq_early)]
    e("s_bitcmp1_b32 s3, 0")
    e("s_cbranch_scc1 L_odd1")
    save = list(e.vm); savel = list(e.lg)
    for par, order in ((0, [4, 5, 6, 7, 0, 1, 2, 3]), (1, [0, 1, 2, 3, 4, 5, 6, 7])):
        if par:
            e("s_branch L_join1")
            e.label("L_odd1")
            e.vm[:] = save; e.lg[:] = savel
        todo = list(later); todoq = list(later_q)
        for k, u in enumerate(order):
            e.wait(vm=f"K@{k}")
            if todo:
                todo.pop(0)(); todo.pop(0)()
            elif todoq:
                todoq.pop(0)()
            convert(Kt[u], "kc")
        assert not todo and not todoq
    e.label("L_join1")
    stamp()
    e.wait(lg="all")
    for s in range(6):
        for u in range(4):
            c = "0" if s == 0 else S(4*u, 4)
            e(f"v_mfma_f32_16x16x32_bf16 {S(4*u,4)}, {Kt[2+u](4*s,4)}, {QG(4*s,4)}, {c}")
    m, tmp, l = V(vT), V(vT + 1), V(vT + 2)
    e(f"v_mov_b32 {V(vT+3)}, 0")
    e(f"v_mov_b32 {V(vT+4)}, {XCH+512}")
    e("s_lshl_b32 s51, s3, 2")
    e(f"v_add_u32 {V(vT+5)}, s51, {V(vMX)}")
    e(f"v_max3_f32 {m}, {S(0)}, {S(1)}, {S(2)}")
    for k in range(3, 15, 2):
        e(f"v_max3_f32 {m}, {m}, {S(k)}, {S(k+1)}")
    e(f"v_max_f32 {m}, {m}, {S(15)}")
    xlane(m, tmp, "v_max_f32")
    e(f"ds_write_b32 {V(vT+5)}, {m}")
    e(f"ds_write_b32 {V(vT+4)}, {V(vT+3)}")
    e.wait(lg="all")
    e("s_barrier")
    e(f"ds_read_b128 {V(vT+8,4)}, {V(vMX)}", tag="mx")
    e.wait(lg="all")
    e(f"v_max3_f32 {m}, {V(vT+8)}, {V(vT+9)}, {V(vT+10)}")
    e(f"v_max_f32 {m}, {m}, {V(vT+11)}")
    e(f"v_mul_f32 {m}, s49, {m}")
    for k in range(16):
        e(f"v_fma_f32 {S(k)}, {S(k)}, s49, -{m}")
    for k in range(16):
        e(f"v_exp_f32 {S(k)}, {S(k)}")
    e(f"v_add_f32 {l}, {S(0)}, {S(1)}")
    for k in range(2, 16):
        e(f"v_add_f32 {l}, {l}, {S(k)}")
    for k in range(8):
        e(f"v_cvt_pk_bf16_f32 {P(k)}, {S(2*k)}, {S(2*k+1)}")
    xlane(l, tmp, "v_add_f32")
    e(f"ds_write_b128 {V(vPW)}, {P(0,4)} offset:6144")
    e(f"ds_write_b128 {V(vPW)}, {P(4,4)} offset:7168")
    e(f"ds_write_b32 {V(vT+5)}, {l} offset:256")
    e(f"v_mov_b32 {V(vT+6)}, {m}")
    stamp()
    e.wait(vm="V", lg="all")
    e("s_barrier")
    stamp()
    PG = R("v", 108); OG = R("v", 140)

    def gv_reads(ks):
        F = F012[ks % 3]
        if ks == 4:
            for i in range(3):
                e(f"v_add_u32 {V(vGV+i)}, {8*TILEB}, {V(vGV+i)}")
        base = (ks % 4) * 2 * TILEB
        for i in range(3):
            e(f"ds_read_b64_tr_b16 {F(4*i,2)}, {V(vGV+i)} offset:{base}", tag=f"gv{ks}")
            e(f"ds_read_b64_tr_b16 {F(4*i+2,2)}, {V(vGV+i)} offset:{base+TILEB}", tag=f"gv{ks}")
    for ks in range(8):
        e(f"ds_read_b128 {PG(4*ks,4)}, {V(vPR)} offset:{(ks//2)*SCRB + (ks%2)*1024}", tag="pg")
    e(f"ds_read_b128 {V(vT+8,4)}, {V(vMX)} offset:256", tag="lx")
    gv_reads(0); gv_reads(1)
    for ks in range(8):
        if ks + 2 < 8:
            gv_reads(ks + 2)
        e.wait(lg=f"gv{ks}")
        F = F012[ks % 3]
        for i in range(3):
            c = "0" if ks == 0 else OG(4*i, 4)
            e(f"v_mfma_f32_16x16x32_bf16 {OG(4*i,4)}, {F(4*i,4)}, {PG(4*ks,4)}, {c}")
    e(f"v_add_f32 {V(vT+7)}, {V(vT+8)}, {V(vT+9)}")
    e(f"v_add_f32 {V(vT+7)}, {V(vT+7)}, {V(vT+10)}")
    e(f"v_add_f32 {V(vT+7)}, {V(vT+7)}, {V(vT+11)}")
    e(f"buffer_store_dwordx2 {V(vT+6,2)}, {V(vML)}, {SW}, 0 offen sc1", tag="part")
    for i in range(3):
        e(f"buffer_store_dwordx4 {OG(4*i,4)}, {V(vWS)}, {SW}, 0 offen offset:{64*i} sc1", tag="part")
    for t in range(nq_early, 4):
        load_q(t)
    stamp()
    sig_tile = max(nq_early, 1) if hold else 3
    chk_tile = 3

    def v_reads(t, T, F):
        a, b = T >> 2, T & 3
        for ks in range(3):
            for h in range(2):
                u = 2 * ks + h
                if u < 5:
                    e(f"ds_read_b64_tr_b16 {F(4*ks+2*h,2)}, {V(vVR+b)} offset:{128*a + TILEB*(t+u)}", tag=f"v{T}")
                else:
                    e(f"ds_read_b64_tr_b16 {F(4*ks+2*h,2)}, {V(vVG)} offset:{8192+32*T}", tag=f"v{T}")

    CB = R("a", 0)
    for t in range(4):
        e.comment(f"---- tile {t}")
        slack = 1 if t > sig_tile else 0
        if t == sig_tile and not hold:
            e.wait(vm=[f"Q{t}", "part"])
        else:
            e.wait(vm=f"Q{t}")
        convert(Qt[t], "q")
        if t == sig_tile:
            e(f"v_mov_b32 {V(vT+3)}, 1")
            e(f"v_mov_b32 {V(vT+4)}, {XCH+512}")
            e("s_mov_b64 exec, 1")
            e(f"ds_add_rtn_u32 {V(vPR)}, {V(vT+4)}, {V(vT+3)}", tag="cnt")
            e("s_mov_b64 exec, -1")
        if t > 0:
            e("s_cmp_eq_u32 s48, 0")
            e(f"s_cbranch_scc1 L_nobias{t}")
            bias(t)
            e.label(f"L_nobias{t}")
        if t == chk_tile and sig_tile < chk_tile:
            check_arrival(e, CB, SW, vL, vT, "O2")
        Fb = F012 + [R(Kt[t].f, Kt[t].b), R(Kt[t].f, Kt[t].b + 12), R(Qt[t].f, Qt[t].b), R(Qt[t].f, Qt[t].b + 12)]
        pre = []
        for T in range(3):
            pre.append((T, Fb[T]))
        for s in range(6):
            e.wait(lg=f"q{s}")
            for u in range(6):
                a_op = Kt[t + u](4*s, 4) if u < 5 else KG(4*s, 4)
                c = B(4*u, 4) if s == 0 else S(4*u, 4)
                e(f"v_mfma_f32_16x16x32_bf16 {S(4*u,4)}, {a_op}, {Qt[t](4*s,4)}, {c}")
            if s == 5 and t == sig_tile:
                e.wait(lg="cnt")
                e(f"v_readfirstlane_b32 s61, {V(vPR)}")
                e("s_cmp_lg_u32 s61, 3")
                e("s_cbranch_scc1 L_nosig")
                e("s_lshl_b32 s44, s40, 2")
                e(f"v_mov_b32 {V(vT+4)}, s44")
                e(f"v_mov_b32 {V(vPW)}, 1")
                e("s_mov_b64 exec, 1")
                sv = list(e.vm)
                e(f"buffer_atomic_add {V(vPW)}, {V(vT+4)}, {SD}, 0 offen sc0", tag="atom")
                e.vm[:] = sv
                e("s_mov_b64 exec, -1")
                e.label("L_nosig")
            if s in (1, 3, 5):
                T = s // 2
                v_reads(t, T, Fb[T])
        e(f"v_max3_f32 {m}, {S(0)}, {S(1)}, {S(2)}")
        e(f"v_max3_f32 {l}, {S(3)}, {S(4)}, {S(5)}")
        for k in range(6, 22, 4):
            e(f"v_max3_f32 {m}, {m}, {S(k)}, {S(k+1)}")
            e(f"v_max3_f32 {l}, {l}, {S(k+2)}, {S(k+3)}")
        e(f"v_max3_f32 {m}, {m}, {S(22)}, {S(23)}")
        e(f"v_max_f32 {m}, {m}, {l}")
        xlane(m, tmp, "v_max_f32")
        e(f"v_mul_f32 {m}, s49, {m}")
        v_reads(t, 3, Fb[3])
        for k in range(22):
            e(f"v_fma_f32 {S(k)}, {S(k)}, s49, -{m}")
        v_reads(t, 4, Fb[4])
        for k in range(22):
            e(f"v_exp_f32 {S(k)}, {S(k)}")
        v_reads(t, 5, Fb[5])
        e(f"v_add_f32 {l}, {S(0)}, {S(1)}")
        e(f"v_add_f32 {V(vT+3)}, {S(2)}, {S(3)}")
        for k in range(4, 22, 2):
            e(f"v_add_f32 {l}, {l}, {S(k)}")
            e(f"v_add_f32 {V(vT+3)}, {V(vT+3)}, {S(k+1)}")
        e(f"v_add_f32 {l}, {l}, {V(vT+3)}")
        xlane(l, tmp, "v_add_f32")
        e(f"v_rcp_f32 {l}, {l}")
        v_reads(t, 6, Fb[6])
        for k in range(22):
            e(f"v_mul_f32 {S(k)}, {S(k)}, {l}")
        for k in range(11):
            e(f"v_cvt_pk_bf16_f32 {P(k)}, {S(2*k)}, {S(2*k+1)}")
        e(f"v_mov_b32 {P(11)}, 0")
        def pack(T):
            a, b = T >> 2, T & 3
            e(f"v_cvt_pk_bf16_f32 {O(4*T)}, {O(4*T)}, {O(4*T+1)}")
            e(f"v_cvt_pk_bf16_f32 {O(4*T+1)}, {O(4*T+2)}, {O(4*T+3)}")
            e(f"ds_write_b64 {V(vOW+b)}, {O(4*T,2)} offset:{128*a}", tag="ow")
        for T in range(12):
            F = Fb[T % 7]
            e.wait(lg=f"v{T}")
            for ks in range(3):
                c = "0" if ks == 0 else O(4*T, 4)
                e(f"v_mfma_f32_16x16x32_bf16 {O(4*T,4)}, {F(4*ks,4)}, {P(4*ks,4)}, {c}")
            if T + 7 < 12:
                v_reads(t, T + 7, F)
            if T >= 3:
                pack(T - 3)
        for T in range(9, 12):
            pack(T)
        for i in range(6):
            e(f"ds_read_b128 {O(24+4*i,4)}, {V(vOR+i%3)} offset:{3072*(i//3)}", tag=f"or{i}")
        e(f"s_add_i32 s44, s42, {t*TILEB}")
        for i in range(6):
            e.wait(lg=f"or{i}")
            va = vLinM if (t == 0 and i == 0) else (vLin if i < 4 else vLin4)
            e(f"buffer_store_dwordx4 {O(24+4*i,4)}, {V(va)}, {SO}, s44 offen offset:{(i*1024)%4096} {sf}", tag=f"O{t}")
        stamp()
    if sig_tile == chk_tile:
        check_arrival(e, CB, SW, vL, vT, "O3")
    e("s_cmp_lg_u32 s61, 7")
    e("s_cbranch_scc1 L_fin")
    e("s_waitcnt vmcnt(0)" if sig_tile == chk_tile else "s_waitcnt vmcnt(6)")
    W = R("v", 72)
    for k in range(16):
        e(f"v_accvgpr_read_b32 {W(k)}, {CB(48+k)}")
    e(f"v_max3_f32 {m}, {W(0)}, {W(2)}, {W(4)}")
    e(f"v_max3_f32 {m}, {m}, {W(6)}, {W(8)}")
    e(f"v_max3_f32 {m}, {m}, {W(10)}, {W(12)}")
    e(f"v_max_f32 {m}, {m}, {W(14)}")
    for s in range(8):
        e(f"v_sub_f32 {W(2*s)}, {W(2*s)}, {m}")
    for s in range(8):
        e(f"v_exp_f32 {W(2*s)}, {W(2*s)}")
    e(f"v_mul_f32 {l}, {W(0)}, {W(1)}")
    for s in range(1, 8):
        e(f"v_fmac_f32 {l}, {W(2*s)}, {W(2*s+1)}")
    e(f"v_rcp_f32 {l}, {l}")
    X = R("v", 96); Y = R("v", 104)
    for s in range(8):
        for k in range(6):
            e(f"v_accvgpr_read_b32 {Y(k)}, {CB(6*s+k)}")
        for k in range(6):
            if s == 0:
                e(f"v_mul_f32 {X(k)}, {W(0)}, {Y(k)}")
            else:
                e(f"v_fmac_f32 {X(k)}, {W(2*s)}, {Y(k)}")
    for k in range(6):
        e(f"v_mul_f32 {X(k)}, {X(k)}, {l}")
    for k in range(3):
        e(f"v_cvt_pk_bf16_f32 {X(k)}, {X(2*k)}, {X(2*k+1)}")
    e(f"v_mul_u32_u24 {tmp}, 12, {V(vL)}")
    e(f"buffer_store_dwordx3 {X(0,3)}, {tmp}, {SO}, 0 offen")
    e.label("L_fin")
    if stamps:
        stamp()
        e("s_waitcnt vmcnt(0)")
        stamp()
        e("s_load_dwordx2 s[20:21], s[0:1], 56")
        e("s_waitcnt lgkmcnt(0)")
        e("s_mov_b32 s22, 0x1000000")
        e("s_lshl_b32 s44, s2, 2")
        e("s_add_u32 s44, s44, s3")
        e("s_lshl_b32 s44, s44, 6")
        e("s_add_u32 s44, s44, 0x100000")
        e(f"v_mov_b32 {V(vT+1)}, 0")
        for k in range(nst[0]):
            e(f"v_mov_b32 {V(vT)}, s{64+2*k}")
            e(f"buffer_store_dword {V(vT)}, {V(vT+1)}, {SW}, s44 offen offset:{4*k}")
            e("s_nop 1")
    if amp:
        e("; AMPSPIN")
    e.label("L_end")
    e("s_endpgm")
    text = e.finish()
    if amp:
        a, b, Amp = amp
        spin = f"""    s_sub_u32 s90, s{64+2*b}, s{64+2*a}
    s_mul_i32 s90, s90, {Amp}
    s_memrealtime s[92:93]
    s_waitcnt lgkmcnt(0)
    s_add_u32 s90, s90, s92
L_spin:
    s_memrealtime s[92:93]
    s_waitcnt lgkmcnt(0)
    s_sub_u32 s91, s92, s90
    s_cmp_lt_i32 s91, 0
    s_cbranch_scc1 L_spin
"""
        text = text.replace("    ; AMPSPIN\n", spin)
    return HEADER.format(lds=LDS_TOTAL, kn=KN) + text + FOOTER.format(kn=KN)


def check_arrival(e, CB, SW, vL, vT, after):
    e("s_cmp_lg_u32 s61, 3")
    e("s_cbranch_scc1 L_notlast")
    cnt = sum(1 for x in e.vm if x == after)
    e(f"s_waitcnt vmcnt({cnt})")
    e("v_readfirstlane_b32 s61, v28")
    e("s_cmp_lg_u32 s61, 7")
    e("s_cbranch_scc1 L_notlast")
    sv = list(e.vm)
    e(f"v_lshrrev_b32 {V(vT+4)}, 5, {V(vL)}")
    e(f"v_and_b32 {V(vT+5)}, 31, {V(vL)}")
    e(f"v_mul_u32_u24 {V(vT+5)}, 24, {V(vT+5)}")
    e(f"v_mul_u32_u24 {V(vT+6)}, 768, {V(vT+4)}")
    e(f"v_add_u32 {V(vT+5)}, {V(vT+5)}, {V(vT+6)}")
    e(f"v_lshlrev_b32 {V(vT+4)}, 6, {V(vT+4)}")
    e("s_mov_b32 s50, 12288")
    for k in range(4):
        e(f"buffer_load_dwordx4 {CB(48+4*k,4)}, {V(vT+4)}, {SW}, s50 offen offset:{16*k} sc1")
    for s in range(8):
        e(f"s_mov_b32 s50, {s*1536}")
        e(f"buffer_load_dwordx4 {CB(6*s,4)}, {V(vT+5)}, {SW}, s50 offen sc1")
        e(f"buffer_load_dwordx2 {CB(6*s+4,2)}, {V(vT+5)}, {SW}, s50 offen offset:16 sc1")
    e.vm[:] = sv
    e.label("L_notlast")


if __name__ == "__main__":
    import ast
    out = sys.argv[1]
    kw = {}
    for a in sys.argv[2:]:
        k, v = a.split("=", 1)
        try:
            kw[k] = ast.literal_eval(v)
        except Exception:
            kw[k] = v
    open(out, "w").write(gen(**kw))
```

```python
import re

REG_RE = re.compile(r"(?<![\w.])([vas])(?:(\d+)|\[(\d+):(\d+)\])(?![\w])")


def regs_of(op):
    out = set()
    for m in REG_RE.finditer(op):
        k = m.group(1)
        if m.group(2) is not None:
            out.add((k, int(m.group(2))))
        else:
            for i in range(int(m.group(3)), int(m.group(4)) + 1):
                out.add((k, i))
    if re.search(r"\bvcc\b", op):
        out.add(("vcc", 0))
    if re.search(r"\bm0\b", op):
        out.add(("m0", 0))
    if re.search(r"\bexec\b", op):
        out.add(("exec", 0))
    return out


TRANS = ("v_exp_f32", "v_log_f32", "v_rcp_f32", "v_rsq_f32", "v_sqrt_f32")


class Ins:
    def __init__(self, text):
        self.text = text
        t = text.split(";")[0].strip()
        self.label = t.endswith(":")
        self.mn = t.split()[0] if t else ""
        rest = t[len(self.mn):].strip()
        self.ops = [o.strip() for o in rest.split(",")] if rest else []
        self.r, self.w = set(), set()
        self.kind = "other"
        self.srcc = set()
        self.states = 1
        mn = self.mn
        R = [regs_of(o) for o in self.ops]
        if self.label or not mn or mn.startswith("."):
            self.kind = "none"
            self.states = 0
        elif mn == "s_nop":
            self.kind = "nop"
            self.states = int(self.ops[0]) + 1
        elif mn.startswith("v_mfma"):
            self.kind = "mfma"
            self.w = R[0]
            self.ab = R[1] | R[2]
            self.srcc = R[3]
            self.r = self.ab | self.srcc
            self.passes = 4 if "16x16" in mn else 8
        elif mn.startswith("v_permlane"):
            self.kind = "valu"
            self.perm = True
            self.w = R[0] | R[1]
            self.r = R[0] | R[1]
        elif mn.startswith("v_cmp"):
            self.kind = "valu"
            self.w = R[0]
            self.r = set().union(*R[1:])
        elif mn.startswith("v_readfirstlane") or mn.startswith("v_readlane"):
            self.kind = "valu"
            self.rl = True
            self.w = R[0]
            self.r = set().union(*R[1:])
        elif mn.startswith("v_"):
            self.kind = "valu"
            self.w = R[0]
            self.r = set().union(*R[1:]) if len(R) > 1 else set()
            if mn.startswith(("v_fmac", "v_pk_fmac")):
                self.r |= R[0]
            if "_co_" in mn:
                self.w |= R[1]
        elif mn.startswith("ds_"):
            self.kind = "ds"
            if mn.startswith("ds_read") or "_rtn_" in mn:
                self.w = R[0]
                self.r = set().union(*R[1:])
            else:
                self.r = set().union(*R)
        elif mn.startswith("buffer_") or mn.startswith("global_"):
            self.kind = "vmem"
            is_lds = re.search(r"\blds\b", t) is not None
            if is_lds:
                self.r = set().union(*R) | {("m0", 0)}
                self.ldsdma = True
            elif "load" in mn:
                self.w = R[0]
                self.r = set().union(*R[1:])
            elif "atomic" in mn:
                self.r = set().union(*R)
                if re.search(r"\bsc0\b", t):
                    self.w = R[0]
            elif "store" in mn:
                self.r = set().union(*R)
                if "x3" in mn or "x4" in mn:
                    self.widedata = R[0]
            else:
                self.r = set().union(*R) if R else set()
        elif mn.startswith("s_"):
            self.kind = "salu"
            if mn.startswith(("s_cmp", "s_bitcmp", "s_cbranch", "s_branch", "s_waitcnt", "s_barrier", "s_endpgm", "s_setprio", "s_sleep")):
                self.r = set().union(*R) if R else set()
            else:
                self.w = R[0]
                self.r = set().union(*R[1:]) if len(R) > 1 else set()
                if "saveexec" in mn:
                    self.w = self.w | {("exec", 0)}


def need(prod, cons):
    n = 0
    pk, ck = prod.kind, cons.kind
    vw = {x for x in prod.w if x[0] in "va" and x[0] != "vcc"}
    sw = {x for x in prod.w if x[0] in ("s", "vcc")}
    if pk == "valu":
        if ck == "mfma" and vw & cons.r:
            n = max(n, 2)
        if ck == "valu" and getattr(cons, "perm", False) and vw & cons.r:
            n = max(n, 2)
        if ck == "valu" and "dpp" in cons.text and vw & cons.r:
            n = max(n, 2)
        if ck == "valu" and getattr(cons, "rl", False) and vw & cons.r:
            n = max(n, 1)
        if prod.mn.startswith(TRANS) and ck == "valu" and vw & cons.r:
            n = max(n, 1)
        if sw & cons.r:
            if ck == "valu":
                n = max(n, 4 if getattr(cons, "rl", False) else 2)
            if ck == "vmem":
                n = max(n, 5)
            if ck == "salu":
                n = max(n, 1)
        if ("exec", 0) in prod.w and ck in ("valu", "mfma"):
            n = max(n, 5)
    if pk == "salu":
        if ("m0", 0) in prod.w and getattr(cons, "ldsdma", False):
            n = max(n, 1)
    if pk == "mfma":
        P = prod.passes
        far = {4: 8, 8: 12}[P]
        if ck == "mfma":
            if prod.w & cons.ab:
                n = max(n, far)
            if prod.w & cons.srcc and prod.w != cons.srcc:
                n = max(n, {4: 6, 8: 10}[P])
            if prod.w & cons.w and prod.w != cons.srcc:
                n = max(n, far)
        elif ck in ("valu", "ds", "vmem"):
            if prod.w & (cons.r | cons.w):
                n = max(n, far)
            if ck == "valu" and prod.srcc & cons.w:
                n = max(n, {4: 3, 8: 7}[P])
            if ck in ("ds", "vmem") and prod.srcc & cons.w:
                n = max(n, {4: 3, 8: 7}[P])
    if pk == "vmem" and getattr(prod, "widedata", None):
        if prod.widedata & cons.w:
            n = max(n, 2)
    return n


class Asm:
    def __init__(self):
        self.lines = []
        self.vm = []
        self.lg = []

    def __call__(self, text, tag=None):
        for t in text.split("\n"):
            t = t.strip()
            if not t:
                continue
            i = Ins(t)
            self.lines.append(i)
            if i.kind == "vmem" and not i.mn.startswith(("buffer_inv", "buffer_wbl2")):
                self.vm.append(tag)
            elif i.kind == "ds":
                self.lg.append(tag)

    def label(self, name):
        self.lines.append(Ins(name + ":"))

    def comment(self, c):
        self.lines.append(Ins("; " + c))

    def _count(self, q, tags):
        if not isinstance(tags, (list, tuple, set)):
            tags = [tags]
        idx = [k for k, t in enumerate(q) if t in tags]
        if not idx:
            return None
        last = max(idx)
        n = len(q) - 1 - last
        del q[: last + 1]
        return n

    def wait(self, vm=None, lg=None, slack_vm=0):
        parts = []
        if vm is not None:
            if vm == "all":
                n = 0
                self.vm.clear()
            else:
                n = self._count(self.vm, vm)
            if n is not None:
                n = max(0, n - slack_vm)
                parts.append(f"vmcnt({min(n, 63)})")
        if lg is not None:
            if lg == "all":
                n = 0
                self.lg.clear()
            else:
                n = self._count(self.lg, lg)
            if n is not None:
                parts.append(f"lgkmcnt({min(n, 15)})")
        if parts:
            self.lines.append(Ins("s_waitcnt " + " ".join(parts)))

    def finish(self):
        L = self.lines
        out = []
        labels = {}
        pending = {}
        for ins in L:
            if ins.label:
                out.append(ins)
                labels[ins.mn[:-1]] = len(out) - 1
                continue
            if ins.kind == "none":
                out.append(ins)
                continue
            req = self._required(out, len(out) - 1, ins, pending)
            while req > 0:
                k = min(req, 16)
                out.append(Ins(f"s_nop {k-1}"))
                req -= k
            out.append(ins)
            if ins.mn.startswith(("s_cbranch", "s_branch")):
                tgt = ins.ops[0]
                assert tgt not in labels, "backward branch not supported by hazard pass: " + tgt
                pending.setdefault(tgt, []).append(len(out) - 1)
        self.out = out
        return "\n".join(("" if i.label else "    ") + i.text for i in out) + "\n"

    def _required(self, out, start, cons, pending):
        best = 0
        stack = [(start, 0)]
        seen = set()
        while stack:
            k, dist = stack.pop()
            while k >= 0 and dist < 21:
                if (k, dist) in seen:
                    break
                seen.add((k, dist))
                p = out[k]
                if p.label:
                    for b in pending.get(p.mn[:-1], []):
                        stack.append((b, dist))
                    kk = k - 1
                    while kk >= 0 and out[kk].kind == "none" and not out[kk].label:
                        kk -= 1
                    if kk >= 0 and out[kk].mn in ("s_branch", "s_endpgm"):
                        break
                    k -= 1
                    continue
                if p.kind != "none":
                    n = need(p, cons)
                    if n - dist > best:
                        best = n - dist
                    dist += p.states
                k -= 1
        return best


def code_size(text, kn):
    import subprocess, tempfile, os
    d = tempfile.mkdtemp()
    open(d + "/k.s", "w").write(text)
    r = subprocess.run(["clang", "-x", "assembler", "-target", "amdgcn-amd-amdhsa", "-mcpu=gfx950", "-c", d + "/k.s", "-o", d + "/k.o"], capture_output=True, text=True)
    assert r.returncode == 0, r.stderr[:3000]
    o = subprocess.run(["llvm-objdump", "-t", d + "/k.o"], capture_output=True, text=True).stdout
    a = {}
    for line in o.splitlines():
        p = line.split()
        if p and p[-1] in (kn, "L_end"):
            a[p[-1]] = int(p[0], 16)
    return a["L_end"] - a[kn]
```

```python
import sys, struct
from asmdsl import Asm, code_size

KN = "standalone__global_local_windowed_global_tokens__prompt_kernel"
HEADB = 786432
TILEB = 6144
VIMG = 320 * 384
SCRB = 9216
XCH = VIMG + 4 * SCRB
LDS_TOTAL = XCH + 1024
SCALE = 192 ** -0.5 * 1.4426950408889634
BIG = 0xF1000000


def f2u(x):
    return struct.unpack("<I", struct.pack("<f", x))[0]


HEADER = """; Windowed (|i-j|<=32) + 2 global tokens attention, B=1 H=32 S=2048 D=192, bf16.
; @launch grid=(256,1,1) block=(256,1,1) lds={lds}
.amdgcn_target "amdgcn-amd-amdhsa--gfx950"
.text
.globl {kn}
.p2align 8
.type {kn},@function
{kn}:
"""
FOOTER = """
.section .rodata,"a"
.p2align 6
.amdhsa_kernel {kn}
  .amdhsa_next_free_vgpr 512
  .amdhsa_next_free_sgpr 96
  .amdhsa_accum_offset 256
  .amdhsa_group_segment_fixed_size 0
  .amdhsa_kernarg_size 64
  .amdhsa_user_sgpr_count 2
  .amdhsa_user_sgpr_kernarg_segment_ptr 1
  .amdhsa_system_sgpr_workgroup_id_x 1
  .amdhsa_float_denorm_mode_32 3
.end_amdhsa_kernel
"""


def V(i, n=1):
    return f"v{i}" if n == 1 else f"v[{i}:{i+n-1}]"


def A(i, n=1):
    return f"a{i}" if n == 1 else f"a[{i}:{i+n-1}]"


class R:
    def __init__(self, f, b):
        self.f, self.b = f, b

    def __call__(self, off=0, n=1):
        i = self.b + off
        return f"{self.f}{i}" if n == 1 else f"{self.f}[{i}:{i+n-1}]"


def gen(lf="nt", sf="sc1", stamps=False, gf="", amp=None, pf=True, fine=None, la=2, qf=None, vf=None):
    e = Asm()
    qf = lf if qf is None else qf
    vf = lf if vf is None else vf
    SQ, SK, SV, SO, SW, SD = "s[4:7]", "s[8:11]", "s[12:15]", "s[16:19]", "s[20:23]", "s[24:27]"
    vL, vLin, vLin4, vLinM = 0, 1, 2, 3
    vCW, vCR, vOW, vOR, vVR, vVG = 4, 7, 9, 13, 16, 20
    vVD, vGR, vGV, vPW, vPR, vMX, vWS, vML = 21, 24, 25, 28, 29, 30, 31, 32
    vJ, vG4, vBig = 33, 34, 35
    vT = 36
    B = R("v", 48)
    Ss = [R("v", 72), R("v", 96)]
    Ps = [R("v", 120), R("v", 132)]
    O = R("v", 144); KG = R("v", 192)
    Kt = [R("a", 24 * u) for u in range(8)]
    Qt = [R("a", 192), R("a", 216), R("a", 192), R("a", 216)]
    Fp = [R("v", 216), R("v", 228), R("v", 240), R("a", 240)]
    QG = R("v", 144); SG = R("v", 168)
    PG = R("v", 72); OG = R("v", 104)
    m, tmp, l, l2 = V(vT), V(vT + 1), V(vT + 2), V(vT + 3)
    nst = [0]

    def fstamp(t):
        if fine == t:
            k = nst[0]
            e(f"s_memtime s[{64+2*k}:{65+2*k}]")
            e("s_waitcnt lgkmcnt(0)")
            e.lg.clear()
            nst[0] += 1

    def stamp():
        if stamps and fine is None:
            k = nst[0]
            e(f"s_memrealtime s[{64+2*k}:{65+2*k}]")
            e("s_waitcnt lgkmcnt(0)")
            e.lg.clear()
            nst[0] += 1

    e("s_cmp_ge_u32 s2, 256")
    e("s_cbranch_scc1 L_end")
    e("s_load_dwordx2 s[8:9], s[0:1], 8")
    e("s_load_dwordx2 s[4:5], s[0:1], 0")
    e("s_load_dwordx2 s[12:13], s[0:1], 16")
    e("s_load_dwordx2 s[16:17], s[0:1], 40")
    e("s_load_dwordx2 s[24:25], s[0:1], 48")
    e("s_load_dwordx2 s[20:21], s[0:1], 56")
    if stamps:
        e("s_memrealtime s[64:65]")
        nst[0] = 1
    if pf:
        e("s_getpc_b64 s[62:63]")
        e("v_lshlrev_b32 v2, 7, v0")
        e("v_min_u32 v2, CODE_LAST, v2")
        e("global_load_dword v47, v2, s[62:63]", tag="g")
    e("v_lshrrev_b32 v1, 6, v0")
    e(f"v_and_b32 {V(vL)}, 63, v0")
    e("v_readfirstlane_b32 s3, v1")
    e("s_and_b32 s40, s2, 7")
    e("s_lshr_b32 s41, s2, 3")
    e("s_lshl_b32 s40, s40, 2")
    e("s_lshr_b32 s44, s41, 3")
    e("s_add_u32 s40, s40, s44")
    e("s_and_b32 s41, s41, 7")
    e(f"v_lshlrev_b32 {V(vLin)}, 4, {V(vL)}")
    e(f"s_mul_i32 s45, s40, {HEADB}")
    e("s_lshl_b32 s60, s41, 2")
    e("s_add_u32 s60, s60, s3")
    e(f"s_mul_i32 s42, s60, {4*TILEB}")
    e("s_lshl_b32 s60, s60, 6")
    e(f"s_mul_i32 s43, s3, {SCRB}")
    e(f"s_add_u32 s43, s43, {VIMG}")
    e(f"v_add_u32 {V(vLin4)}, 4096, {V(vLin)}")
    e(f"s_mov_b32 s10, {HEADB}")
    e("s_mov_b32 s11, 0x20000")
    e(f"s_mov_b32 s6, {HEADB}")
    e("s_mov_b32 s7, 0x20000")
    e(f"s_mov_b32 s14, {HEADB}")
    e("s_mov_b32 s15, 0x20000")
    e("s_waitcnt lgkmcnt(0)")
    for b in (8, 4, 12):
        e(f"s_add_u32 s{b}, s{b}, s45")
        e(f"s_addc_u32 s{b+1}, s{b+1}, 0")

    def load_g():
        for off, srd in ((6144, SK), (7168, SQ), (8192, SV)):
            e(f"s_add_u32 m0, s43, {off}")
            e(f"buffer_load_dwordx4 {V(vLin)}, {srd}, 0 offen {gf} lds", tag="g")

    def load_tile(dst, srd, tag, soff, fl):
        for i in range(6):
            e(f"buffer_load_dwordx4 {dst(4*i,4)}, {V(vLin if i < 4 else vLin4)}, {srd}, {soff} offen offset:{(i*1024)%4096} {fl}", tag=tag)

    def load_k(u, k):
        e(f"s_add_i32 s44, s42, {(u-2)*TILEB}")
        if u < 2:
            e("s_max_i32 s44, s44, 0")
        if u > 5:
            e(f"s_min_i32 s44, s44, {2032*384}")
        load_tile(Kt[u], SK, f"K@{k}", "s44", lf)

    def load_q(t):
        e(f"s_add_i32 s44, s42, {t*TILEB}")
        load_tile(Qt[t], SQ, f"Q{t}", "s44", qf)

    vgroups = [0, 32, 4, 36, 8, 12, 16, 20, 24, 28]
    vnext = [0]

    def load_v(n=1):
        for _ in range(n):
            g = vgroups[vnext[0]]; vnext[0] += 1
            e(f"s_add_u32 m0, s47, {g*3072}")
            e(f"s_add_i32 s44, s46, {g*3072}")
            if g < 4:
                e("s_max_i32 s44, s44, 0")
            if g > 32:
                e(f"s_min_i32 s44, s44, {2040*384}")
            for mm in range(3):
                e(f"buffer_load_dwordx4 {V(vVD+mm)}, {SV}, s44 offen offset:{1024*mm} {vf} lds", tag="V")

    def consts_vd():
        for m in range(3):
            n, r, c, x = vT, vT + 1, vT + 2, vT + 3
            e(f"v_add_u32 {V(n)}, {64*m}, {V(vL)}")
            e(f"v_mul_u32_u24 {V(r)}, 2731, {V(n)}")
            e(f"v_lshrrev_b32 {V(r)}, 16, {V(r)}")
            e(f"v_mul_u32_u24 {V(c)}, 24, {V(r)}")
            e(f"v_sub_u32 {V(c)}, {V(n)}, {V(c)}")
            e(f"v_and_b32 {V(x)}, 6, {V(r)}")
            e(f"v_xor_b32 {V(x)}, {V(x)}, {V(c)}")
            e(f"v_mul_u32_u24 {V(n)}, 384, {V(r)}")
            e(f"v_lshl_add_u32 {V(vVD+m)}, {V(x)}, 4, {V(n)}")
            if m:
                e(f"v_subrev_u32 {V(vVD+m)}, {1024*m}, {V(vVD+m)}")
            e(f"v_xor_b32 {V(x)}, {V(r)}, {V(c)}")
            e(f"v_lshl_add_u32 {V(x)}, {V(x)}, 4, {V(n)}")
            e(f"v_add_u32 {V(vOR+m)}, s43, {V(x)}")
            e(f"v_and_b32 {V(x)}, 7, {V(c)}")
            e(f"v_xor_b32 {V(x)}, {V(x)}, {V(r)}")
            e(f"v_and_b32 {V(n)}, 3, {V(c)}")
            e(f"v_lshl_add_u32 {V(x)}, {V(n)}, 4, {V(x)}")
            e(f"v_lshrrev_b32 {V(c)}, 2, {V(c)}")
            e(f"v_lshl_add_u32 {V(x)}, {V(c)}, 6, {V(x)}")
            e(f"v_lshlrev_b32 {V(x)}, 4, {V(x)}")
            e(f"v_add_u32 {V(vCW+m)}, s43, {V(x)}")

    def consts_rest():
        j, g, t0, t1, t2 = vJ, vT, vT + 1, vT + 2, vT + 3
        e(f"v_and_b32 {V(j)}, 15, {V(vL)}")
        e(f"v_lshrrev_b32 {V(g)}, 4, {V(vL)}")
        e(f"v_lshlrev_b32 {V(vG4)}, 2, {V(g)}")
        e(f"v_mov_b32 {V(vBig)}, {BIG:#x}")
        for p in range(2):
            e(f"v_or_b32 {V(t0)}, {4*p}, {V(g)}")
            e(f"v_xor_b32 {V(t0)}, {V(t0)}, {V(j)}")
            e(f"v_lshl_add_u32 {V(t0)}, {V(g)}, 4, {V(t0)}")
            e(f"v_lshlrev_b32 {V(t0)}, 4, {V(t0)}")
            e(f"v_add_u32 {V(vCR+p)}, s43, {V(t0)}")
        e(f"v_and_b32 {V(t0)}, 1, {V(j)}")
        e(f"v_mul_u32_u24 {V(t0)}, 384, {V(t0)}")
        e(f"v_lshl_add_u32 {V(t0)}, {V(g)}, 4, {V(t0)}")
        e(f"v_add_u32 {V(vGR)}, s43, {V(t0)}")
        e(f"v_mul_u32_u24 {V(t1)}, 384, {V(j)}")
        e(f"v_and_b32 {V(t0)}, 1, {V(g)}")
        e(f"v_lshl_add_u32 {V(t1)}, {V(t0)}, 3, {V(t1)}")
        e(f"v_add_u32 {V(t1)}, s43, {V(t1)}")
        e(f"v_lshrrev_b32 {V(t2)}, 1, {V(g)}")
        e(f"v_and_b32 {V(t0)}, 7, {V(j)}")
        e(f"v_xor_b32 {V(t2)}, {V(t2)}, {V(t0)}")
        for b in range(4):
            e(f"v_xor_b32 {V(t0)}, {2*b}, {V(t2)}")
            e(f"v_lshl_add_u32 {V(vOW+b)}, {V(t0)}, 4, {V(t1)}")
        e(f"v_lshrrev_b32 {V(t0)}, 2, {V(vL)}")
        e(f"v_mul_u32_u24 {V(t1)}, 384, {V(t0)}")
        e(f"v_and_b32 {V(t2)}, 3, {V(vL)}")
        e(f"v_lshl_add_u32 {V(t1)}, {V(t2)}, 3, {V(t1)}")
        e(f"v_bfe_u32 {V(vT+4)}, {V(vL)}, 3, 2")
        e(f"s_mul_i32 s44, s3, {4*TILEB}")
        for b in range(4):
            e(f"v_xor_b32 {V(t0)}, {b}, {V(vT+4)}")
            e(f"v_lshl_add_u32 {V(t0)}, {V(t0)}, 5, {V(t1)}")
            e(f"v_add_u32 {V(vVR+b)}, s44, {V(t0)}")
        for i in range(3):
            e("s_mul_i32 s44, s3, 3")
            e(f"s_add_u32 s44, s44, {i}")
            e("s_and_b32 s50, s44, 3")
            e("s_lshr_b32 s44, s44, 2")
            e("s_lshl_b32 s44, s44, 7")
            e(f"s_add_u32 s44, s44, {2*TILEB}")
            e(f"v_xor_b32 {V(t0)}, s50, {V(vT+4)}")
            e(f"v_lshl_add_u32 {V(t0)}, {V(t0)}, 5, {V(t1)}")
            e(f"v_add_u32 {V(vGV+i)}, s44, {V(t0)}")
        e(f"v_bfe_u32 {V(t0)}, {V(vL)}, 2, 1")
        e(f"v_mul_u32_u24 {V(t0)}, 384, {V(t0)}")
        e(f"v_lshl_add_u32 {V(t0)}, {V(t2)}, 3, {V(t0)}")
        e(f"v_add_u32 {V(vVG)}, s43, {V(t0)}")
        e(f"v_add_u32 {V(vPW)}, s43, {V(vLin)}")
        e(f"v_add_u32 {V(vPR)}, {VIMG + 6144}, {V(vLin)}")
        e(f"v_lshlrev_b32 {V(t0)}, 4, {V(j)}")
        e(f"v_add_u32 {V(vMX)}, {XCH}, {V(t0)}")
        e("s_mul_i32 s44, s41, 1536")
        e("s_mul_i32 s50, s3, 192")
        e("s_add_u32 s44, s44, s50")
        e(f"v_mul_u32_u24 {V(t0)}, 768, {V(j)}")
        e(f"v_lshl_add_u32 {V(t0)}, {V(g)}, 4, {V(t0)}")
        e(f"v_add_u32 {V(t0)}, s44, {V(t0)}")
        e(f"v_cmp_gt_u32 vcc, 2, {V(j)}")
        e(f"v_cndmask_b32 {V(vWS)}, {V(vBig)}, {V(t0)}, vcc")
        e("s_lshl_b32 s44, s41, 3")
        e("s_add_u32 s44, s44, 12288")
        e(f"v_lshlrev_b32 {V(t0)}, 6, {V(j)}")
        e(f"v_add_u32 {V(t0)}, s44, {V(t0)}")
        e("s_cmp_eq_u32 s3, 0")
        e("s_cselect_b32 s44, 2, 0")
        e(f"v_cmp_gt_u32 vcc, s44, {V(vL)}")
        e(f"v_cndmask_b32 {V(vML)}, {V(vBig)}, {V(t0)}, vcc")
        e("s_cmp_eq_u32 s60, 0")
        e("s_cselect_b32 s44, 48, 0")
        e(f"v_cmp_gt_u32 vcc, s44, {V(vL)}")
        e(f"v_cndmask_b32 {V(vLinM)}, {V(vLin)}, {V(vBig)}, vcc")
        e("s_cmp_eq_u32 s60, 0")
        e("s_cselect_b32 s48, 1, 0")
        e("s_cmp_eq_u32 s60, 1984")
        e("s_cselect_b32 s48, 1, s48")
        e(f"v_cmp_gt_u32 vcc, 16, {V(vL)}")
        e(f"v_cndmask_b32 {B(20)}, {V(vBig)}, 0, vcc")
        e(f"v_mov_b32 {B(22)}, {V(vBig)}")
        e(f"v_mov_b32 {B(21)}, {B(20)}")
        e(f"v_mov_b32 {B(23)}, {V(vBig)}")
        e(f"s_mov_b32 s49, {f2u(SCALE):#x}")
        e("s_add_u32 s16, s16, s45")
        e("s_addc_u32 s17, s17, 0")
        e(f"s_mov_b32 s18, {HEADB}")
        e("s_mov_b32 s19, 0x20000")
        e("s_lshl_b32 s44, s40, 14")
        e("s_add_u32 s20, s20, s44")
        e("s_addc_u32 s21, s21, 0")
        e("s_mov_b32 s22, 16384")
        e("s_mov_b32 s23, 0x20000")
        e("s_mov_b32 s26, 256")
        e("s_mov_b32 s27, 0x20000")

    def bias(t):
        lo, sp, y = vT, vT + 1, vT + 2
        e(f"s_sub_i32 s44, {34-16*t}, s60")
        e(f"s_sub_i32 s50, {2047+32-16*t}, s60")
        e(f"v_max_i32 {V(lo)}, s44, {V(vJ)}")
        e(f"v_add_u32 {V(sp)}, 64, {V(vJ)}")
        e(f"v_min_i32 {V(sp)}, s50, {V(sp)}")
        e(f"v_sub_u32 {V(sp)}, {V(sp)}, {V(lo)}")
        e(f"v_sub_u32 {V(y)}, {V(vG4)}, {V(lo)}")
        for u in range(5):
            for r in range(4):
                e(f"v_add_u32 {V(vT+4+r)}, {16*u+r}, {V(y)}")
            for r in range(4):
                e(f"v_cmp_gt_u32 s[{52+2*r}:{53+2*r}], {V(vT+4+r)}, {V(sp)}")
            for r in range(4):
                e(f"v_cndmask_b32 {B(4*u+r)}, 0, {V(vBig)}, s[{52+2*r}:{53+2*r}]")

    def T(text, tag=None):
        return lambda: e(text, tag=tag)

    def convert_ops(reg, tag):
        ops = [T(f"ds_write_b128 {V(vCW+i%3)}, {reg(4*i,4)} offset:{128*(i//3)}", "cw") for i in range(6)]
        ops += [T(f"ds_read_b128 {reg(4*s,4)}, {V(vCR+(s&1))} offset:{1024*s}", f"{tag}{s}") for s in range(6)]
        return ops

    def run(ops):
        for o in ops:
            o()

    def xlane_ops(x, op):
        ops = []
        for sw in ("v_permlane32_swap_b32", "v_permlane16_swap_b32"):
            ops += [T(f"v_mov_b32 {tmp}, {x}"), T(f"{sw} {x}, {tmp}"), T(f"{op} {x}, {x}, {tmp}")]
        return ops

    def weave(mf, fill, lead=0):
        fill = list(fill)
        run(fill[:lead]); fill = fill[lead:]
        n = len(mf); done = 0
        for i, mo in enumerate(mf):
            mo()
            upto = (len(fill) * (i + 1) + n - 1) // n
            run(fill[done:upto]); done = upto

    def score_mfmas(t):
        S = Ss[t & 1]
        mf = []
        for s in range(6):
            for u in range(6):
                a_op = Kt[t + u](4*s, 4) if u < 5 else KG(4*s, 4)
                c = B(4*u, 4) if s == 0 else S(4*u, 4)
                txt = f"v_mfma_f32_16x16x32_bf16 {S(4*u,4)}, {a_op}, {Qt[t](4*s,4)}, {c}"
                if u == 0:
                    mf.append(lambda s=s, txt=txt: (e.wait(lg=f"q{s}"), e(txt)))
                else:
                    mf.append(T(txt))
        return mf

    def softmax_ops(t):
        S, P = Ss[t & 1], Ps[t & 1]
        o = [T(f"v_max3_f32 {m}, {S(0)}, {S(1)}, {S(2)}"), T(f"v_max3_f32 {l}, {S(3)}, {S(4)}, {S(5)}")]
        for k in range(6, 22, 4):
            o += [T(f"v_max3_f32 {m}, {m}, {S(k)}, {S(k+1)}"), T(f"v_max3_f32 {l}, {l}, {S(k+2)}, {S(k+3)}")]
        o += [T(f"v_max_f32 {m}, {m}, {l}")]
        o += xlane_ops(m, "v_max_f32")
        o += [T(f"v_mul_f32 {m}, s49, {m}")]
        o += [T(f"v_fma_f32 {S(k)}, {S(k)}, s49, -{m}") for k in range(22)]
        for k in range(22):
            o.append(T(f"v_exp_f32 {S(k)}, {S(k)}"))
            if k == 3:
                o.append(T(f"v_add_f32 {l}, {S(0)}, {S(1)}"))
            elif k == 4:
                o.append(T(f"v_mov_b32 {P(11)}, 0"))
            elif k == 5:
                o.append(T(f"v_add_f32 {l2}, {S(2)}, {S(3)}"))
            elif k > 5:
                d = l if k % 2 == 0 else l2
                o.append(T(f"v_add_f32 {d}, {d}, {S(k-2)}"))
        o += [T(f"v_add_f32 {l}, {l}, {S(20)}"), T(f"v_add_f32 {l2}, {l2}, {S(21)}"), T(f"v_add_f32 {l}, {l}, {l2}")]
        o += xlane_ops(l, "v_add_f32")
        o += [T(f"v_rcp_f32 {l}, {l}")]
        for k in range(11):
            o += [T(f"v_mul_f32 {S(2*k)}, {S(2*k)}, {l}"), T(f"v_mul_f32 {S(2*k+1)}, {S(2*k+1)}, {l}")]
            if k > 0:
                o.append(T(f"v_cvt_pk_bf16_f32 {P(k-1)}, {S(2*k-2)}, {S(2*k-1)}"))
        o.append(T(f"v_cvt_pk_bf16_f32 {P(10)}, {S(20)}, {S(21)}"))
        return o

    def edge_bias(t):
        e("s_cmp_eq_u32 s48, 0")
        e(f"s_cbranch_scc1 L_nobias{t}")
        bias(t)
        e.label(f"L_nobias{t}")

    def job_reads(job, F):
        kind, x, y = job
        ops = []
        tag = f"j{kind}{x}_{y}"
        if kind == "G":
            base = (x % 4) * 2 * TILEB
            for i in range(3):
                if x == 4:
                    ops.append(lambda i=i, base=base: (e(f"v_add_u32 {V(vGV+i)}, {8*TILEB}, {V(vGV+i)}"),
                                            e(f"ds_read_b64_tr_b16 {F(4*i,2)}, {V(vGV+i)} offset:{base}", tag=tag)))
                else:
                    ops.append(T(f"ds_read_b64_tr_b16 {F(4*i,2)}, {V(vGV+i)} offset:{base}", tag))
                ops.append(T(f"ds_read_b64_tr_b16 {F(4*i+2,2)}, {V(vGV+i)} offset:{base+TILEB}", tag))
        else:
            t, Tn = x, y
            a, b = Tn >> 2, Tn & 3
            for u in range(6):
                if u < 5:
                    ops.append(T(f"ds_read_b64_tr_b16 {F(2*u,2)}, {V(vVR+b)} offset:{128*a + TILEB*(t+u)}", tag))
                else:
                    ops.append(T(f"ds_read_b64_tr_b16 {F(2*u,2)}, {V(vVG)} offset:{8192+32*Tn}", tag))
        return ops

    def job_mfma(job, F, i):
        kind, x, y = job
        if kind == "G":
            c = "0" if x == 0 else OG(4*i, 4)
            e(f"v_mfma_f32_16x16x32_bf16 {OG(4*i,4)}, {F(4*i,4)}, {PG(4*x,4)}, {c}")
        else:
            c = "0" if i == 0 else O(4*y, 4)
            e(f"v_mfma_f32_16x16x32_bf16 {O(4*y,4)}, {F(4*i,4)}, {Ps[x&1](4*i,4)}, {c}")

    def pack_ops(Tn):
        a, b = Tn >> 2, Tn & 3
        return [T(f"v_cvt_pk_bf16_f32 {O(4*Tn)}, {O(4*Tn)}, {O(4*Tn+1)}"),
                T(f"v_cvt_pk_bf16_f32 {O(4*Tn+1)}, {O(4*Tn+2)}, {O(4*Tn+3)}"),
                T(f"ds_write_b64 {V(vOW+b)}, {O(4*Tn,2)} offset:{128*a}", "ow")]

    def readback_ops(RB):
        return [T(f"ds_read_b128 {RB(4*i,4)}, {V(vOR+i%3)} offset:{3072*(i//3)}", f"or{i}") for i in range(6)]

    def store_ops(t, RB):
        ops = [T(f"s_add_i32 s50, s42, {t*TILEB}")]
        for i in range(6):
            va = vLinM if (t == 0 and i == 0) else (vLin if i < 4 else vLin4)
            txt = f"buffer_store_dwordx4 {RB(4*i,4)}, {V(va)}, {SO}, s50 offen offset:{(i*1024)%4096} {sf}"
            ops.append(lambda i=i, txt=txt: (e.wait(lg=f"or{i}"), e(txt, tag=f"O{t}")))
        return ops

    def run_jobs(jobs, Fb, extra, preloaded):
        D = len(Fb)
        for j in range(preloaded, min(D, len(jobs))):
            run(job_reads(jobs[j], Fb[j]))
        for j, job in enumerate(jobs):
            F = Fb[j % D]
            rd = job_reads(jobs[j + D], F) if j + D < len(jobs) else []
            ex = list(extra.get(j, []))
            e.wait(lg=f"j{job[0]}{job[1]}_{job[2]}")
            for i in range(3):
                job_mfma(job, F, i)
                run(rd[2*i:2*i+2])
                k = (len(ex) + (2 - i)) // (3 - i)
                run(ex[:k]); ex = ex[k:]

    orders = ([4, 5, 6, 7, 0, 1, 2, 3], [0, 1, 2, 3, 4, 5, 6, 7])
    e("s_bitcmp1_b32 s3, 0")
    e("s_cbranch_scc1 L_odd0")
    save = list(e.vm)
    for par in (0, 1):
        if par:
            e("s_branch L_join0")
            e.label("L_odd0")
            e.vm[:] = save
        for k in range(la):
            load_k(orders[par][k], k)
    e.label("L_join0")
    load_g()
    e("s_mul_i32 s46, s41, 98304")
    e("s_mul_i32 s47, s3, 3072")
    e(f"s_add_i32 s46, s46, {-32*384}")
    e("s_add_i32 s46, s46, s47")
    consts_vd()
    consts_rest()
    bias(0)
    stamp()
    e("s_bitcmp1_b32 s3, 0")
    e("s_cbranch_scc1 L_odd1")
    save = list(e.vm); savel = list(e.lg)
    for par in (0, 1):
        if par:
            e("s_branch L_join1")
            e.label("L_odd1")
            e.vm[:] = save; e.lg[:] = savel; vnext[0] = 0
        todo = [lambda k=k: load_k(orders[par][k], k) for k in range(la, 8)] + [lambda: load_q(0), lambda: load_q(1)]
        todo += [lambda: load_v(2)] * (la - 2)
        for k in range(8):
            e.wait(vm=f"K@{k}")
            todo.pop(0)()
            run(convert_ops(Kt[orders[par][k]], "kc"))
            if k == la:
                for s in range(6):
                    e(f"ds_read_b128 {KG(4*s,4)}, {V(vGR)} offset:{6144+64*s}", tag="kg")
                for s in range(6):
                    e(f"ds_read_b128 {QG(4*s,4)}, {V(vGR)} offset:{7168+64*s}", tag="qg")
        assert not todo
    e.label("L_join1")
    stamp()
    load_v(1)
    e.wait(lg="all")
    for s in range(6):
        for u in range(4):
            c = "0" if s == 0 else SG(4*u, 4)
            e(f"v_mfma_f32_16x16x32_bf16 {SG(4*u,4)}, {Kt[2+u](4*s,4)}, {QG(4*s,4)}, {c}")
    load_v(1)
    e(f"v_mov_b32 {l2}, 0")
    e(f"v_mov_b32 {V(vT+4)}, {XCH+512}")
    e("s_lshl_b32 s51, s3, 2")
    e(f"v_add_u32 {V(vT+11)}, s51, {V(vMX)}")
    e(f"v_max3_f32 {m}, {SG(0)}, {SG(1)}, {SG(2)}")
    for k in range(3, 15, 2):
        e(f"v_max3_f32 {m}, {m}, {SG(k)}, {SG(k+1)}")
    e(f"v_max_f32 {m}, {m}, {SG(15)}")
    run(xlane_ops(m, "v_max_f32"))
    e(f"ds_write_b32 {V(vT+11)}, {m}")
    e(f"ds_write_b32 {V(vT+4)}, {l2}")
    e.wait(vm="Q0")
    load_v(1)
    run(convert_ops(Qt[0], "q"))
    load_v(1)
    run(score_mfmas(0))
    stamp()
    edge_bias(1)
    e.wait(vm="Q1")
    load_v(1)
    sm = softmax_ops(0)
    cv = convert_ops(Qt[1], "q")
    half = len(sm) // 2
    weave(score_mfmas(1), cv + sm[:half] + [lambda: load_v(1)] + sm[half:], lead=12 + 18)
    load_v(1)
    sm = softmax_ops(1)
    run(sm[:half]); load_v(1); run(sm[half:])
    stamp()
    e.wait(lg="all")
    e("s_barrier")
    e(f"ds_read_b128 {V(vT+4,4)}, {V(vMX)}", tag="mx")
    if vnext[0] < 10:
        load_v(1)
    e.wait(lg="all")
    e(f"v_max3_f32 {m}, {V(vT+4)}, {V(vT+5)}, {V(vT+6)}")
    e(f"v_max_f32 {m}, {m}, {V(vT+7)}")
    e(f"v_mul_f32 {V(vT+8)}, s49, {m}")
    for k in range(16):
        e(f"v_fma_f32 {SG(k)}, {SG(k)}, s49, -{V(vT+8)}")
    for k in range(16):
        e(f"v_exp_f32 {SG(k)}, {SG(k)}")
    e(f"v_add_f32 {l}, {SG(0)}, {SG(1)}")
    for k in range(2, 16):
        e(f"v_add_f32 {l}, {l}, {SG(k)}")
    for k in range(8):
        e(f"v_cvt_pk_bf16_f32 {QG(k)}, {SG(2*k)}, {SG(2*k+1)}")
    run(xlane_ops(l, "v_add_f32"))
    e(f"ds_write_b128 {V(vPW)}, {QG(0,4)} offset:6144")
    e(f"ds_write_b128 {V(vPW)}, {QG(4,4)} offset:7168")
    e(f"ds_write_b32 {V(vT+11)}, {l} offset:256")
    while vnext[0] < 10:
        load_v(1)
    load_q(2)
    stamp()
    e.wait(vm="V", lg="all")
    e("s_barrier")
    stamp()
    halves = lambda r: [R(r.f, r.b), R(r.f, r.b + 12)]
    Fb = Fp + halves(Kt[0]) + halves(Kt[1])
    jobs = [("G", k, 0) for k in range(8)] + [("C", 0, Tn) for Tn in range(12)] + [("C", 1, Tn) for Tn in range(12)]
    e(f"ds_read_b128 {PG(0,4)}, {V(vPR)} offset:0", tag="pg")
    run(job_reads(jobs[0], Fb[0]))
    for ks in range(1, 8):
        e(f"ds_read_b128 {PG(4*ks,4)}, {V(vPR)} offset:{(ks//2)*SCRB + (ks%2)*1024}", tag="pg")
    e(f"ds_read_b128 {V(vT+4,4)}, {V(vMX)} offset:256", tag="lx")
    load_q(3)
    extra = {}
    extra[8] = [T(f"v_add_f32 {V(vT+9)}, {V(vT+4)}, {V(vT+5)}"), T(f"v_add_f32 {V(vT+9)}, {V(vT+9)}, {V(vT+6)}"),
                T(f"v_add_f32 {V(vT+9)}, {V(vT+9)}, {V(vT+7)}")]
    extra[9] = [T(f"buffer_store_dwordx2 {V(vT+8,2)}, {V(vML)}, {SW}, 0 offen sc1", "part")]
    extra[10] = [T(f"buffer_store_dwordx4 {OG(4*i,4)}, {V(vWS)}, {SW}, 0 offen offset:{64*i} sc1", "part") for i in range(3)]
    for Tn in range(12):
        extra[11 + Tn] = pack_ops(Tn)
    RB0 = Ss[0]
    extra[23] = readback_ops(RB0)
    so = store_ops(0, RB0)
    extra[24] = so[:4]; extra[25] = so[4:]
    pk = [o for Tn in range(9) for o in pack_ops(Tn)]
    for k, j in enumerate(range(26, 32)):
        lo, hi = (len(pk) * k) // 6, (len(pk) * (k + 1)) // 6
        extra[j] = pk[lo:hi]
    run_jobs(jobs, Fb, extra, 1)
    stamp()
    RB1 = Ss[1]
    edge_bias(2)
    for Tn in range(9, 12):
        run(pack_ops(Tn))
    run(readback_ops(RB1))
    e.wait(vm="Q2")
    run(convert_ops(Qt[2], "q"))
    run(store_ops(1, RB1))
    run(score_mfmas(2))
    stamp()
    edge_bias(3)
    e.wait(vm=["Q3", "part"])
    e(f"v_mov_b32 {V(vT+5)}, 1")
    e(f"v_mov_b32 {V(vT+4)}, {XCH+512}")
    e("s_mov_b64 exec, 1")
    e(f"ds_add_rtn_u32 {V(vPR)}, {V(vT+4)}, {V(vT+5)}", tag="cnt")
    e("s_mov_b64 exec, -1")

    def signal():
        e.wait(lg="cnt")
        e(f"v_readfirstlane_b32 s61, {V(vPR)}")
        e("s_cmp_lg_u32 s61, 3")
        e("s_cbranch_scc1 L_nosig")
        e("s_lshl_b32 s44, s40, 2")
        e(f"v_mov_b32 {V(vT+4)}, s44")
        e(f"v_mov_b32 {V(vPW)}, 1")
        e("s_mov_b64 exec, 1")
        sv = list(e.vm)
        e(f"buffer_atomic_add {V(vPW)}, {V(vT+4)}, {SD}, 0 offen sc0", tag="atom")
        e.vm[:] = sv
        e("s_mov_b64 exec, -1")
        e.label("L_nosig")
    Fb = Fp + halves(Kt[0]) + halves(Kt[1])
    jobs = [("C", 2, Tn) for Tn in range(12)]
    pre = [o for j in range(8) for o in job_reads(jobs[j], Fb[j])]
    sm = softmax_ops(2)
    cv = convert_ops(Qt[3], "q")
    tail = []
    n1 = len(sm) - 48
    for k in range(48):
        tail += [sm[n1 + k], pre[k]]
    weave(score_mfmas(3), cv[:6] + [signal] + cv[6:] + sm[:n1] + tail, lead=13 + 18)
    stamp()
    extra = {3 + Tn: pack_ops(Tn) for Tn in range(9)}
    run_jobs(jobs, Fb, extra, 8)
    stamp()
    RB2 = Ss[0]
    Fb = Fp + halves(Kt[3]) + halves(Kt[4])
    jobs = [("C", 3, Tn) for Tn in range(12)]
    pre = [o for j in range(8) for o in job_reads(jobs[j], Fb[j])]
    sm = softmax_ops(3)
    run(sm[:8])
    for Tn in range(9, 12):
        run(pack_ops(Tn))
    run(readback_ops(RB2))
    run(sm[8:24])
    run(store_ops(2, RB2))
    CB = R("a", 0)
    check_arrival(e, CB, SW, vL, vT, "O2")
    n1 = len(sm) - 48
    run(sm[24:n1])
    for k in range(48):
        sm[n1 + k](); pre[k]()
    stamp()
    run_jobs(jobs, Fb, extra, 8)
    for Tn in range(9, 12):
        run(pack_ops(Tn))
    RB3 = Ss[1]
    run(readback_ops(RB3))
    run(store_ops(3, RB3))
    stamp()
    e("s_cmp_lg_u32 s61, 7")
    e("s_cbranch_scc1 L_fin")
    e("s_waitcnt vmcnt(6)")
    W = R("v", 72)
    for k in range(16):
        e(f"v_accvgpr_read_b32 {W(k)}, {CB(48+k)}")
    e(f"v_max3_f32 {m}, {W(0)}, {W(2)}, {W(4)}")
    e(f"v_max3_f32 {m}, {m}, {W(6)}, {W(8)}")
    e(f"v_max3_f32 {m}, {m}, {W(10)}, {W(12)}")
    e(f"v_max_f32 {m}, {m}, {W(14)}")
    for s in range(8):
        e(f"v_sub_f32 {W(2*s)}, {W(2*s)}, {m}")
    for s in range(8):
        e(f"v_exp_f32 {W(2*s)}, {W(2*s)}")
    e(f"v_mul_f32 {l}, {W(0)}, {W(1)}")
    for s in range(1, 8):
        e(f"v_fmac_f32 {l}, {W(2*s)}, {W(2*s+1)}")
    e(f"v_rcp_f32 {l}, {l}")
    X = R("v", 120); Y = R("v", 128)
    for s in range(8):
        for k in range(6):
            e(f"v_accvgpr_read_b32 {Y(k)}, {CB(6*s+k)}")
        for k in range(6):
            if s == 0:
                e(f"v_mul_f32 {X(k)}, {W(0)}, {Y(k)}")
            else:
                e(f"v_fmac_f32 {X(k)}, {W(2*s)}, {Y(k)}")
    for k in range(6):
        e(f"v_mul_f32 {X(k)}, {X(k)}, {l}")
    for k in range(3):
        e(f"v_cvt_pk_bf16_f32 {X(k)}, {X(2*k)}, {X(2*k+1)}")
    e(f"v_mul_u32_u24 {tmp}, 12, {V(vL)}")
    e(f"buffer_store_dwordx3 {X(0,3)}, {tmp}, {SO}, 0 offen {sf}")
    e.label("L_fin")
    if stamps:
        e("s_waitcnt vmcnt(0)")
        stamp()
        e("s_load_dwordx2 s[20:21], s[0:1], 56")
        e("s_waitcnt lgkmcnt(0)")
        e("s_mov_b32 s22, 0x1000000")
        e("s_lshl_b32 s44, s2, 2")
        e("s_add_u32 s44, s44, s3")
        e("s_lshl_b32 s44, s44, 6")
        e("s_add_u32 s44, s44, 0x100000")
        e(f"v_mov_b32 {V(vT+1)}, 0")
        for k in range(nst[0]):
            e(f"v_mov_b32 {V(vT)}, s{64+2*k}")
            e(f"buffer_store_dword {V(vT)}, {V(vT+1)}, {SW}, s44 offen offset:{4*k}")
            e("s_nop 1")
    e.label("L_end")
    e("s_endpgm")
    text = e.finish()
    full = HEADER.format(lds=LDS_TOTAL, kn=KN) + text + FOOTER.format(kn=KN)
    if pf:
        full = full.replace("CODE_LAST", str(code_size(full.replace("CODE_LAST", "0x1234"), KN) - 128))
    return full


def check_arrival(e, CB, SW, vL, vT, after):
    e("s_cmp_lg_u32 s61, 3")
    e("s_cbranch_scc1 L_notlast")
    cnt = sum(1 for x in e.vm if x == after)
    e(f"s_waitcnt vmcnt({cnt})")
    e("v_readfirstlane_b32 s61, v28")
    e("s_cmp_lg_u32 s61, 7")
    e("s_cbranch_scc1 L_notlast")
    sv = list(e.vm)
    e(f"v_lshrrev_b32 {V(vT+4)}, 5, {V(vL)}")
    e(f"v_and_b32 {V(vT+5)}, 31, {V(vL)}")
    e(f"v_mul_u32_u24 {V(vT+5)}, 24, {V(vT+5)}")
    e(f"v_mul_u32_u24 {V(vT+6)}, 768, {V(vT+4)}")
    e(f"v_add_u32 {V(vT+5)}, {V(vT+5)}, {V(vT+6)}")
    e(f"v_lshlrev_b32 {V(vT+4)}, 6, {V(vT+4)}")
    e("s_mov_b32 s50, 12288")
    for k in range(4):
        e(f"buffer_load_dwordx4 {CB(48+4*k,4)}, {V(vT+4)}, {SW}, s50 offen offset:{16*k} sc1")
    for s in range(8):
        e(f"s_mov_b32 s50, {s*1536}")
        e(f"buffer_load_dwordx4 {CB(6*s,4)}, {V(vT+5)}, {SW}, s50 offen sc1")
        e(f"buffer_load_dwordx2 {CB(6*s+4,2)}, {V(vT+5)}, {SW}, s50 offen offset:16 sc1")
    e.vm[:] = sv
    e.label("L_notlast")


if __name__ == "__main__":
    import ast
    out = sys.argv[1]
    kw = {}
    for a in sys.argv[2:]:
        k, v = a.split("=", 1)
        try:
            kw[k] = ast.literal_eval(v)
        except Exception:
            kw[k] = v
    open(out, "w").write(gen(**kw))
```

```python
import re

REG_RE = re.compile(r"(?<![\w.])([vas])(?:(\d+)|\[(\d+):(\d+)\])(?![\w])")


def regs_of(op):
    out = set()
    for m in REG_RE.finditer(op):
        k = m.group(1)
        if m.group(2) is not None:
            out.add((k, int(m.group(2))))
        else:
            for i in range(int(m.group(3)), int(m.group(4)) + 1):
                out.add((k, i))
    if re.search(r"\bvcc\b", op):
        out.add(("vcc", 0))
    if re.search(r"\bm0\b", op):
        out.add(("m0", 0))
    if re.search(r"\bexec\b", op):
        out.add(("exec", 0))
    return out


TRANS = ("v_exp_f32", "v_log_f32", "v_rcp_f32", "v_rsq_f32", "v_sqrt_f32")


class Ins:
    def __init__(self, text):
        self.text = text
        t = text.split(";")[0].strip()
        self.label = t.endswith(":")
        self.mn = t.split()[0] if t else ""
        rest = t[len(self.mn):].strip()
        self.ops = [o.strip() for o in rest.split(",")] if rest else []
        self.r, self.w = set(), set()
        self.kind = "other"
        self.srcc = set()
        self.states = 1
        mn = self.mn
        R = [regs_of(o) for o in self.ops]
        if self.label or not mn or mn.startswith("."):
            self.kind = "none"
            self.states = 0
        elif mn == "s_nop":
            self.kind = "nop"
            self.states = int(self.ops[0]) + 1
        elif mn.startswith("v_mfma"):
            self.kind = "mfma"
            self.w = R[0]
            self.ab = R[1] | R[2]
            self.srcc = R[3]
            self.r = self.ab | self.srcc
            self.passes = 4 if "16x16" in mn else 8
        elif mn.startswith("v_permlane"):
            self.kind = "valu"
            self.perm = True
            self.w = R[0] | R[1]
            self.r = R[0] | R[1]
        elif mn.startswith("v_cmp"):
            self.kind = "valu"
            self.w = R[0]
            self.r = set().union(*R[1:])
        elif mn.startswith("v_readfirstlane") or mn.startswith("v_readlane"):
            self.kind = "valu"
            self.rl = True
            self.w = R[0]
            self.r = set().union(*R[1:])
        elif mn.startswith("v_"):
            self.kind = "valu"
            self.w = R[0]
            self.r = set().union(*R[1:]) if len(R) > 1 else set()
            if mn.startswith(("v_fmac", "v_pk_fmac")):
                self.r |= R[0]
            if "_co_" in mn:
                self.w |= R[1]
        elif mn.startswith("ds_"):
            self.kind = "ds"
            if mn.startswith("ds_read") or "_rtn_" in mn:
                self.w = R[0]
                self.r = set().union(*R[1:])
            else:
                self.r = set().union(*R)
        elif mn.startswith("buffer_") or mn.startswith("global_"):
            self.kind = "vmem"
            is_lds = re.search(r"\blds\b", t) is not None
            if is_lds:
                self.r = set().union(*R) | {("m0", 0)}
                self.ldsdma = True
            elif "load" in mn:
                self.w = R[0]
                self.r = set().union(*R[1:])
            elif "atomic" in mn:
                self.r = set().union(*R)
                if re.search(r"\bsc0\b", t):
                    self.w = R[0]
            elif "store" in mn:
                self.r = set().union(*R)
                if "x3" in mn or "x4" in mn:
                    self.widedata = R[0]
            else:
                self.r = set().union(*R) if R else set()
        elif mn.startswith("s_"):
            self.kind = "salu"
            if mn.startswith(("s_cmp", "s_bitcmp", "s_setpc", "s_cbranch", "s_branch", "s_waitcnt", "s_barrier", "s_endpgm", "s_setprio", "s_sleep")):
                self.r = set().union(*R) if R else set()
            else:
                self.w = R[0]
                self.r = set().union(*R[1:]) if len(R) > 1 else set()
                if "saveexec" in mn:
                    self.w = self.w | {("exec", 0)}


def need(prod, cons):
    n = 0
    pk, ck = prod.kind, cons.kind
    vw = {x for x in prod.w if x[0] in "va" and x[0] != "vcc"}
    sw = {x for x in prod.w if x[0] in ("s", "vcc")}
    if pk == "valu":
        if ck == "mfma" and vw & cons.r:
            n = max(n, 2)
        if ck == "valu" and getattr(cons, "perm", False) and vw & cons.r:
            n = max(n, 2)
        if ck == "valu" and "dpp" in cons.text and vw & cons.r:
            n = max(n, 2)
        if ck == "valu" and getattr(cons, "rl", False) and vw & cons.r:
            n = max(n, 1)
        if prod.mn.startswith(TRANS) and ck == "valu" and vw & cons.r:
            n = max(n, 1)
        if sw & cons.r:
            if ck == "valu":
                n = max(n, 4 if getattr(cons, "rl", False) else 2)
            if ck == "vmem":
                n = max(n, 5)
            if ck == "salu":
                n = max(n, 1)
        if ("exec", 0) in prod.w and ck in ("valu", "mfma"):
            n = max(n, 5)
    if pk == "salu":
        if ("m0", 0) in prod.w and getattr(cons, "ldsdma", False):
            n = max(n, 1)
    if pk == "mfma":
        P = prod.passes
        far = {4: 8, 8: 12}[P]
        if ck == "mfma":
            if prod.w & cons.ab:
                n = max(n, far)
            if prod.w & cons.srcc and prod.w != cons.srcc:
                n = max(n, {4: 6, 8: 10}[P])
            if prod.w & cons.w and prod.w != cons.srcc:
                n = max(n, far)
        elif ck in ("valu", "ds", "vmem"):
            if prod.w & (cons.r | cons.w):
                n = max(n, far)
            if ck == "valu" and prod.srcc & cons.w:
                n = max(n, {4: 3, 8: 7}[P])
            if ck in ("ds", "vmem") and prod.srcc & cons.w:
                n = max(n, {4: 3, 8: 7}[P])
    if pk == "vmem" and getattr(prod, "widedata", None):
        if prod.widedata & cons.w:
            n = max(n, 2)
    return n


class Asm:
    def __init__(self):
        self.lines = []
        self.vm = []
        self.lg = []

    def __call__(self, text, tag=None):
        for t in text.split("\n"):
            t = t.strip()
            if not t:
                continue
            i = Ins(t)
            self.lines.append(i)
            if i.kind == "vmem" and not i.mn.startswith(("buffer_inv", "buffer_wbl2")):
                self.vm.append(tag)
            elif i.kind == "ds":
                self.lg.append(tag)

    def call(self, name, fn, link="s[94:95]"):
        main = self.lines
        self.lines = []
        fn()
        self.lines.append(Ins(f"s_setpc_b64 {link}"))
        body = self.lines
        self.lines = main
        subs = self.__dict__.setdefault("subs", {})
        if name in subs:
            assert [i.text for i in subs[name]] == [i.text for i in body], "subroutine text differs between calls: " + name
        else:
            subs[name] = body
        c = Ins(f"s_call_b64 {link}, {name}")
        c.callee = name
        main.append(c)

    def label(self, name):
        self.lines.append(Ins(name + ":"))

    def comment(self, c):
        self.lines.append(Ins("; " + c))

    def _count(self, q, tags):
        if not isinstance(tags, (list, tuple, set)):
            tags = [tags]
        idx = [k for k, t in enumerate(q) if t in tags]
        if not idx:
            return None
        last = max(idx)
        n = len(q) - 1 - last
        del q[: last + 1]
        return n

    def wait(self, vm=None, lg=None, slack_vm=0):
        parts = []
        if vm is not None:
            if vm == "all":
                n = 0
                self.vm.clear()
            else:
                n = self._count(self.vm, vm)
            if n is not None:
                n = max(0, n - slack_vm)
                parts.append(f"vmcnt({min(n, 63)})")
        if lg is not None:
            if lg == "all":
                n = 0
                self.lg.clear()
            else:
                n = self._count(self.lg, lg)
            if n is not None:
                parts.append(f"lgkmcnt({min(n, 15)})")
        if parts:
            self.lines.append(Ins("s_waitcnt " + " ".join(parts)))

    def finish(self):
        subs = self.__dict__.get("subs", {})
        self.done_subs = {}
        for name, body in subs.items():
            self.done_subs[name] = self._pass(body)
        out, pending = self._pass(self.lines)
        self.out = out
        fmt = lambda L: "\n".join(("" if i.label else "    ") + i.text for i in L) + "\n"
        text = fmt(out)
        for name, (body, _) in self.done_subs.items():
            text += name + ":\n" + fmt(body)
        return text

    def _pass(self, L):
        out = []
        labels = {}
        pending = {}
        for ins in L:
            if ins.label:
                out.append(ins)
                labels[ins.mn[:-1]] = len(out) - 1
                continue
            if ins.kind == "none":
                out.append(ins)
                continue
            req = self._required(out, len(out) - 1, ins, pending, 0)
            callee = getattr(ins, "callee", None)
            if callee:
                dist = 1
                for h in self.done_subs[callee][0]:
                    if h.kind == "none":
                        continue
                    if dist >= 21:
                        break
                    req = max(req, self._required(out, len(out) - 1, h, pending, dist))
                    if h.mn.startswith(("s_cbranch", "s_branch")):
                        continue
                    dist += h.states
            while req > 0:
                k = min(req, 16)
                out.append(Ins(f"s_nop {k-1}"))
                req -= k
            out.append(ins)
            if ins.mn.startswith(("s_cbranch", "s_branch")):
                tgt = ins.ops[0]
                assert tgt not in labels, "backward branch not supported by hazard pass: " + tgt
                pending.setdefault(tgt, []).append(len(out) - 1)
        return out, pending

    def _required(self, out0, start, cons, pending0, dist0):
        best = 0
        stack = [(out0, pending0, start, dist0, None)]
        seen = set()
        while stack:
            out, pending, k, dist, cont = stack.pop()
            while dist < 21:
                if k < 0:
                    if cont is None:
                        break
                    out, pending, k, cont = cont
                    continue
                key = (id(out), k, dist)
                if key in seen:
                    break
                seen.add(key)
                p = out[k]
                if p.label:
                    for b in pending.get(p.mn[:-1], []):
                        stack.append((out, pending, b, dist, cont))
                    kk = k - 1
                    while kk >= 0 and out[kk].kind == "none" and not out[kk].label:
                        kk -= 1
                    if kk >= 0 and out[kk].mn in ("s_branch", "s_endpgm"):
                        break
                    k -= 1
                    continue
                callee = getattr(p, "callee", None)
                if callee:
                    body, bp = self.done_subs[callee]
                    plain = Ins(p.text)
                    cont = ([plain], {}, 0, (out, pending, k - 1, cont))
                    out, pending, k = body, bp, len(body) - 1
                    continue
                if p.kind != "none":
                    n = need(p, cons)
                    if n - dist > best:
                        best = n - dist
                    dist += p.states
                k -= 1
        return best


def code_size(text, kn):
    import subprocess, tempfile, os
    d = tempfile.mkdtemp()
    open(d + "/k.s", "w").write(text)
    r = subprocess.run(["clang", "-x", "assembler", "-target", "amdgcn-amd-amdhsa", "-mcpu=gfx950", "-c", d + "/k.s", "-o", d + "/k.o"], capture_output=True, text=True)
    assert r.returncode == 0, r.stderr[:3000]
    o = subprocess.run(["llvm-objdump", "-t", d + "/k.o"], capture_output=True, text=True).stdout
    a = {}
    for line in o.splitlines():
        p = line.split()
        if p and p[-1] in (kn, "L_codeend"):
            a[p[-1]] = int(p[0], 16)
    return a["L_codeend"] - a[kn]
```

```python
import sys, struct
from asmdsl import Asm, code_size

KN = "standalone__global_local_windowed_global_tokens__prompt_kernel"
HEADB = 786432
TILEB = 6144
VIMG = 320 * 384
SCRB = 9216
XCH = VIMG + 4 * SCRB
LDS_TOTAL = XCH + 1024
SCALE = 192 ** -0.5 * 1.4426950408889634
BIG = 0xF1000000


def f2u(x):
    return struct.unpack("<I", struct.pack("<f", x))[0]


HEADER = """; Windowed (|i-j|<=32) + 2 global tokens attention, B=1 H=32 S=2048 D=192, bf16.
; @launch grid=(256,1,1) block=(256,1,1) lds={lds}
.amdgcn_target "amdgcn-amd-amdhsa--gfx950"
.text
.globl {kn}
.p2align 8
.type {kn},@function
{kn}:
"""
FOOTER = """
.section .rodata,"a"
.p2align 6
.amdhsa_kernel {kn}
  .amdhsa_next_free_vgpr 512
  .amdhsa_next_free_sgpr 96
  .amdhsa_accum_offset 256
  .amdhsa_group_segment_fixed_size 0
  .amdhsa_kernarg_size 64
  .amdhsa_user_sgpr_count 2
  .amdhsa_user_sgpr_kernarg_segment_ptr 1
  .amdhsa_system_sgpr_workgroup_id_x 1
  .amdhsa_float_denorm_mode_32 3
.end_amdhsa_kernel
"""


def V(i, n=1):
    return f"v{i}" if n == 1 else f"v[{i}:{i+n-1}]"


def A(i, n=1):
    return f"a{i}" if n == 1 else f"a[{i}:{i+n-1}]"


class R:
    def __init__(self, f, b):
        self.f, self.b = f, b

    def __call__(self, off=0, n=1):
        i = self.b + off
        return f"{self.f}{i}" if n == 1 else f"{self.f}[{i}:{i+n-1}]"


def gen(lf="nt", sf="sc1", stamps=False, gf="", pf=True, qf=None, vf=None, pfall=False, r128=True, nv0=2, subs=True, fine=False, pace=(1, 2, 1, 2, 3, 1, 2), q3w=True):
    e = Asm()
    qf = lf if qf is None else qf
    vf = lf if vf is None else vf
    SQ, SK, SV, SO, SW, SD = "s[4:7]", "s[8:11]", "s[12:15]", "s[16:19]", "s[20:23]", "s[24:27]"
    vL, vLin, vKA, vLow = 0, 1, 2, 3
    vCW, vCR, vOW, vOR, vQA, vQB, vVR, vVG = 4, 7, 9, 13, 14, 15, 16, 20
    vVD, vGR, vGV, vPW, vPR, vMX, vWS, vML = 21, 24, 25, 28, 29, 30, 31, 32
    vJ, vG4, vBig = 33, 34, 35
    vT = 36
    vST, vSTM, vTRI = 248, 249, 250
    B = R("v", 48)
    Ss = [R("v", 72), R("v", 96)]
    Ps = [R("v", 120), R("v", 132)]
    O = R("v", 144)
    Kt = [R("a", 24 * u) for u in range(8)]
    KG = R("a", 192)
    Qt = [R("v", 192), R("v", 220), R("v", 192), R("v", 220)]
    Fb = [R("v", 176), R("a", 216), R("a", 230), R("a", 0)]
    D = len(Fb)
    QG = R("v", 144); SG = R("v", 168)
    PG = R("v", 72); OG = R("v", 104)
    m, tmp, l, l2 = V(vT), V(vT + 1), V(vT + 2), V(vT + 3)
    nst = [0]

    def fstamp(real=False):
        if fine:
            k = nst[0]
            e(f"{'s_memrealtime' if real else 's_memtime'} s[{64+2*k}:{65+2*k}]")
            e("s_waitcnt lgkmcnt(0)")
            nst[0] += 1

    def stamp():
        if stamps and not fine:
            k = nst[0]
            e(f"s_memrealtime s[{64+2*k}:{65+2*k}]")
            e("s_waitcnt lgkmcnt(0)")
            nst[0] += 1

    def T(text, tag=None):
        return lambda: e(text, tag=tag)

    def run(ops):
        for o in ops:
            o()

    def call(name, fn):
        if subs:
            e.call(name, fn)
        else:
            fn()

    e("s_cmp_ge_u32 s2, 256")
    e("s_cbranch_scc1 L_end")
    e("s_load_dwordx2 s[8:9], s[0:1], 8")
    e("s_load_dwordx2 s[4:5], s[0:1], 0")
    e("s_load_dwordx2 s[12:13], s[0:1], 16")
    e("s_load_dwordx2 s[16:17], s[0:1], 40")
    e("s_load_dwordx2 s[24:25], s[0:1], 48")
    e("s_load_dwordx2 s[20:21], s[0:1], 56")
    if stamps:
        e("s_memrealtime s[64:65]")
        nst[0] = 1
    if pf:
        e("s_getpc_b64 s[62:63]")
        e("v_lshlrev_b32 v46, 7, v0")
    e("v_lshrrev_b32 v1, 6, v0")
    e(f"v_and_b32 {V(vL)}, 63, v0")
    e("v_readfirstlane_b32 s3, v1")
    e("s_and_b32 s40, s2, 7")
    e("s_lshr_b32 s41, s2, 3")
    e("s_lshl_b32 s40, s40, 2")
    e("s_lshr_b32 s44, s41, 3")
    e("s_add_u32 s40, s40, s44")
    e("s_and_b32 s41, s41, 7")
    e(f"v_lshlrev_b32 {V(vLin)}, 4, {V(vL)}")
    e(f"s_mul_i32 s45, s40, {HEADB}")
    e("s_lshl_b32 s60, s41, 2")
    e("s_add_u32 s60, s60, s3")
    e(f"s_mul_i32 s42, s60, {4*TILEB}")
    e("s_lshl_b32 s60, s60, 6")
    e(f"s_mul_i32 s43, s3, {SCRB}")
    e(f"s_add_u32 s43, s43, {VIMG}")
    if r128:
        e(f"v_lshrrev_b32 {V(vT)}, 3, {V(vL)}")
        e(f"v_and_b32 {V(vT+1)}, 7, {V(vL)}")
        e(f"v_mul_u32_u24 {V(vT)}, 384, {V(vT)}")
        e(f"v_lshl_add_u32 {V(vST)}, {V(vT+1)}, 4, {V(vT)}")
        e(f"v_lshrrev_b32 {V(vT)}, 3, {V(vL)}")
        e(f"v_lshlrev_b32 {V(vT)}, 4, {V(vT)}")
        e(f"v_xor_b32 {V(vKA)}, {V(vT)}, {V(vST)}")
        e("s_mul_i32 s46, s41, 98304")
        e("s_mul_i32 s47, s3, 3072")
        e(f"s_add_i32 s46, s46, {-32*384}")
        e("s_add_i32 s46, s46, s47")
    e(f"s_mov_b32 s10, {HEADB}")
    e("s_mov_b32 s11, 0x20000")
    e(f"s_mov_b32 s6, {HEADB}")
    e("s_mov_b32 s7, 0x20000")
    e(f"s_mov_b32 s14, {HEADB}")
    e("s_mov_b32 s15, 0x20000")
    e("s_waitcnt lgkmcnt(0)")
    for b in (8, 4, 12):
        e(f"s_add_u32 s{b}, s{b}, s45")
        e(f"s_addc_u32 s{b+1}, s{b+1}, 0")

    def prefetch_code():
        if not pf:
            return
        if not pfall:
            e("s_cmp_ge_u32 s2, 16")
            e("s_cbranch_scc1 L_nopf")
        e("v_min_u32 v46, CODE_LAST, v46")
        sv = list(e.vm)
        e("global_load_dword v47, v46, s[62:63]")
        e.vm[:] = sv
        if not pfall:
            e.label("L_nopf")

    def load_g():
        for off, srd in ((6144, SK), (7168, SQ), (8192, SV)):
            e(f"s_add_u32 m0, s43, {off}")
            e(f"buffer_load_dwordx4 {V(vLin)}, {srd}, 0 offen {gf} lds", tag="g")

    def load_q_ops(t):
        e(f"s_add_i32 s44, s42, {t*TILEB}")
        ops = []
        for L in range(3):
            ops.append(T(f"buffer_load_dwordx4 {Qt[t](8*L,4)}, {V(vQA)}, {SQ}, s44 offen offset:{128*L} {qf}", f"Q{t}"))
            ops.append(T(f"buffer_load_dwordx4 {Qt[t](8*L+4,4)}, {V(vQB)}, {SQ}, s44 offen offset:{128*L} {qf}", f"Q{t}"))
        return ops

    def load_q(t):
        run(load_q_ops(t))

    groups = [0, 32, 4, 36, 8, 12, 16, 20, 24, 28]
    vnext = [0]

    def load_group(g, va, srd, fl, tag):
        e(f"s_add_u32 m0, s47, {g*3072}")
        e(f"s_add_i32 s44, s46, {g*3072}")
        if g < 4:
            e("s_max_i32 s44, s44, 0")
        if g > 32:
            e(f"s_min_i32 s44, s44, {2040*384}")
        for mm in range(3):
            if mm:
                e("s_add_u32 m0, m0, 896")
            e(f"buffer_load_dwordx4 {V(va)}, {srd}, s44 offen offset:{128*mm} {fl} lds", tag=tag)

    def load_v(n=1):
        for _ in range(n):
            if vnext[0] >= 10:
                return
            load_group(groups[vnext[0]], vVD, SV, vf, "V"); vnext[0] += 1

    def consts_early():
        j, g, t0, t1 = vJ, vT, vT + 1, vT + 2
        e(f"v_and_b32 {V(j)}, 15, {V(vL)}")
        e(f"v_lshrrev_b32 {V(g)}, 4, {V(vL)}")
        e(f"v_and_b32 {V(t0)}, 7, {V(j)}")
        e(f"v_mul_u32_u24 {V(t0)}, 384, {V(t0)}")
        e(f"v_lshl_add_u32 {V(t0)}, {V(g)}, 4, {V(t0)}")
        e(f"v_and_b32 {V(vQB)}, 8, {V(j)}")
        e(f"v_lshl_add_u32 {V(vQA)}, {V(vQB)}, 3, {V(t0)}")
        e(f"v_xor_b32 {V(vQB)}, 64, {V(vQA)}")
        e(f"v_add_u32 {V(vQB)}, 3072, {V(vQB)}")
        e(f"v_lshrrev_b32 {V(t0)}, 3, {V(vL)}")
        e(f"v_and_b32 {V(t0)}, 6, {V(t0)}")
        e(f"v_lshlrev_b32 {V(t0)}, 4, {V(t0)}")
        e(f"v_xor_b32 {V(vVD)}, {V(t0)}, {V(vST)}")
        e(f"v_lshrrev_b32 {V(t0)}, 3, {V(j)}")
        e(f"v_mul_u32_u24 {V(t1)}, 3072, {V(t0)}")
        e(f"v_and_b32 {V(t0)}, 7, {V(j)}")
        e(f"v_lshl_add_u32 {V(t1)}, {V(t0)}, 7, {V(t1)}")
        e(f"v_xor_b32 {V(t0)}, {V(t0)}, {V(g)}")
        e(f"v_lshl_add_u32 {V(t1)}, {V(t0)}, 4, {V(t1)}")
        e(f"s_mul_i32 s50, s3, {4*TILEB}")
        e(f"v_add_u32 {V(vCR)}, s50, {V(t1)}")
        e(f"v_xor_b32 {V(vCR+1)}, 64, {V(vCR)}")
        e(f"v_and_b32 {V(t0)}, 1, {V(j)}")
        e(f"v_mul_u32_u24 {V(t0)}, 384, {V(t0)}")
        e(f"v_lshl_add_u32 {V(t0)}, {V(g)}, 4, {V(t0)}")
        e(f"v_add_u32 {V(vGR)}, s43, {V(t0)}")

    def consts_rest():
        j, g, t0, t1, t2 = vJ, vT, vT + 1, vT + 2, vT + 3
        e(f"v_lshrrev_b32 {V(g)}, 4, {V(vL)}")
        e(f"v_lshlrev_b32 {V(vG4)}, 2, {V(g)}")
        e(f"v_mov_b32 {V(vBig)}, {BIG:#x}")
        e(f"v_lshlrev_b32 {V(t1)}, 7, {V(j)}")
        e(f"v_and_b32 {V(t0)}, 1, {V(g)}")
        e(f"v_lshl_add_u32 {V(t1)}, {V(t0)}, 3, {V(t1)}")
        e(f"v_add_u32 {V(t1)}, s43, {V(t1)}")
        e(f"v_lshrrev_b32 {V(t2)}, 1, {V(g)}")
        e(f"v_and_b32 {V(t0)}, 7, {V(j)}")
        e(f"v_xor_b32 {V(t2)}, {V(t2)}, {V(t0)}")
        for b in range(4):
            e(f"v_xor_b32 {V(t0)}, {2*b}, {V(t2)}")
            e(f"v_lshl_add_u32 {V(vOW+b)}, {V(t0)}, 4, {V(t1)}")
        e(f"v_lshrrev_b32 {V(t0)}, 3, {V(vL)}")
        e(f"v_and_b32 {V(t1)}, 7, {V(vL)}")
        e(f"v_xor_b32 {V(t2)}, {V(t0)}, {V(t1)}")
        e(f"v_lshlrev_b32 {V(t2)}, 4, {V(t2)}")
        e(f"v_lshl_add_u32 {V(t2)}, {V(t0)}, 7, {V(t2)}")
        e(f"v_add_u32 {V(vOR)}, s43, {V(t2)}")
        if not r128:
            e(f"v_mul_u32_u24 {V(t0)}, 384, {V(t0)}")
            e(f"v_lshl_add_u32 {V(vST)}, {V(t1)}, 4, {V(t0)}")
        e(f"v_and_b32 {V(t2)}, 3, {V(vL)}")
        if r128:
            e(f"v_bfe_u32 {V(t0)}, {V(vL)}, 2, 3")
            e(f"v_lshlrev_b32 {V(t1)}, 7, {V(t0)}")
            e(f"v_lshrrev_b32 {V(t0)}, 5, {V(vL)}")
            e(f"v_mul_u32_u24 {V(t0)}, 3072, {V(t0)}")
            e(f"v_add_u32 {V(t1)}, {V(t1)}, {V(t0)}")
        else:
            e(f"v_lshrrev_b32 {V(t0)}, 2, {V(vL)}")
            e(f"v_mul_u32_u24 {V(t1)}, 384, {V(t0)}")
        e(f"v_lshl_add_u32 {V(t1)}, {V(t2)}, 3, {V(t1)}")
        e(f"v_bfe_u32 {V(vT+4)}, {V(vL)}, 3, 2")
        e(f"s_mul_i32 s44, s3, {4*TILEB}")
        for b in range(4):
            e(f"v_xor_b32 {V(t0)}, {b}, {V(vT+4)}")
            e(f"v_lshl_add_u32 {V(t0)}, {V(t0)}, 5, {V(t1)}")
            e(f"v_add_u32 {V(vVR+b)}, s44, {V(t0)}")
        for i in range(3):
            e("s_mul_i32 s44, s3, 3")
            e(f"s_add_u32 s44, s44, {i}")
            e("s_and_b32 s50, s44, 3")
            e("s_lshr_b32 s44, s44, 2")
            e(f"s_lshl_b32 s44, s44, {10 if r128 else 7}")
            e(f"s_add_u32 s44, s44, {2*TILEB}")
            e(f"v_xor_b32 {V(t0)}, s50, {V(vT+4)}")
            e(f"v_lshl_add_u32 {V(t0)}, {V(t0)}, 5, {V(t1)}")
            e(f"v_add_u32 {V(vGV+i)}, s44, {V(t0)}")
        e(f"v_bfe_u32 {V(t0)}, {V(vL)}, 2, 1")
        e(f"v_mul_u32_u24 {V(t0)}, 384, {V(t0)}")
        e(f"v_lshl_add_u32 {V(t0)}, {V(t2)}, 3, {V(t0)}")
        e(f"v_add_u32 {V(vVG)}, s43, {V(t0)}")
        e(f"v_add_u32 {V(vPW)}, s43, {V(vLin)}")
        e(f"v_add_u32 {V(vPR)}, {VIMG + 6144}, {V(vLin)}")
        e(f"v_lshlrev_b32 {V(t0)}, 4, {V(j)}")
        e(f"v_add_u32 {V(vMX)}, {XCH}, {V(t0)}")
        e("s_mul_i32 s44, s41, 1536")
        e("s_mul_i32 s50, s3, 192")
        e("s_add_u32 s44, s44, s50")
        e(f"v_cmp_gt_u32 vcc, 2, {V(j)}")
        e(f"v_mul_u32_u24 {V(t0)}, 768, {V(j)}")
        e(f"v_lshl_add_u32 {V(t0)}, {V(g)}, 4, {V(t0)}")
        e(f"v_add_u32 {V(t0)}, s44, {V(t0)}")
        e(f"v_cndmask_b32 {V(vWS)}, {V(vBig)}, {V(t0)}, vcc")
        e("s_cmp_eq_u32 s3, 0")
        e("s_cselect_b32 s50, 2, 0")
        e(f"v_cmp_gt_u32 vcc, s50, {V(vL)}")
        e("s_lshl_b32 s44, s41, 3")
        e("s_add_u32 s44, s44, 12288")
        e(f"v_lshlrev_b32 {V(t0)}, 6, {V(j)}")
        e(f"v_add_u32 {V(t0)}, s44, {V(t0)}")
        e(f"v_cndmask_b32 {V(vML)}, {V(vBig)}, {V(t0)}, vcc")
        e("s_cmp_eq_u32 s60, 0")
        e("s_cselect_b32 s44, 16, 0")
        e(f"v_cmp_gt_u32 vcc, s44, {V(vL)}")
        e(f"s_mov_b32 s49, {f2u(SCALE):#x}")
        e("s_add_u32 s16, s16, s45")
        e("s_addc_u32 s17, s17, 0")
        e(f"v_cndmask_b32 {V(vSTM)}, {V(vST)}, {V(vBig)}, vcc")
        e(f"v_cmp_gt_u32 vcc, 16, {V(vL)}")
        e(f"s_mov_b32 s18, {HEADB}")
        e("s_mov_b32 s19, 0x20000")
        e(f"v_cndmask_b32 {B(20)}, {V(vBig)}, 0, vcc")
        e(f"v_cndmask_b32 {V(vLow)}, 0, {V(vBig)}, vcc")
        e(f"v_mov_b32 {B(22)}, {V(vBig)}")
        e(f"v_mov_b32 {B(21)}, {B(20)}")
        e(f"v_mov_b32 {B(23)}, {V(vBig)}")
        for r in range(4):
            e(f"v_add_u32 {V(vT+4+r)}, {r}, {V(vG4)}")
        for r in range(4):
            e(f"v_cmp_lt_u32 s[{52+2*r}:{53+2*r}], {V(vT+4+r)}, {V(j)}")
        for r in range(4):
            e(f"v_cndmask_b32 {B(r)}, 0, {V(vBig)}, s[{52+2*r}:{53+2*r}]")
        for r in range(4):
            e(f"v_cmp_gt_u32 s[{52+2*r}:{53+2*r}], {V(vT+4+r)}, {V(j)}")
        for r in range(4):
            e(f"v_cndmask_b32 {B(16+r)}, 0, {V(vBig)}, s[{52+2*r}:{53+2*r}]")
        for k in range(4, 16):
            e(f"v_mov_b32 {B(k)}, 0")
        e("s_lshl_b32 s44, s40, 14")
        e("s_add_u32 s20, s20, s44")
        e("s_addc_u32 s21, s21, 0")
        e("s_mov_b32 s22, 16384")
        e("s_mov_b32 s23, 0x20000")
        e("s_mov_b32 s26, 256")
        e("s_mov_b32 s27, 0x20000")

    def edge_bias(t):
        big, low = V(vBig), V(vLow)
        left = {0: [(V(vTRI + r), B(r)) for r in range(4)] + [(B(k), big) for k in range(8)] + [(B(8), low), (B(9), low)],
                1: [(B(4), low), (B(5), low), (B(6), "0"), (B(7), "0"), (B(8), "0"), (B(9), "0")],
                2: [(B(2), V(vTRI + 2)), (B(3), V(vTRI + 3)), (B(4), "0"), (B(5), "0")],
                3: [(B(0), V(vTRI)), (B(1), V(vTRI + 1))]}[t]
        e("s_cmp_lg_u32 s60, 0")
        e(f"s_cbranch_scc1 L_noleft{t}")
        for d, s_ in left:
            e(f"v_mov_b32 {d}, {s_}")
        if t == 2:
            e(f"v_min_f32 {B(0)}, {V(vTRI)}, {low}")
            e(f"v_min_f32 {B(1)}, {V(vTRI+1)}, {low}")
        e.label(f"L_noleft{t}")
        if t >= 2:
            e("s_cmp_lg_u32 s60, 1984")
            e(f"s_cbranch_scc1 L_noright{t}")
            for r in range(4):
                e(f"v_mov_b32 {B((16 if t == 2 else 12) + r)}, {big}")
            e.label(f"L_noright{t}")

    def capture(fn):
        nonlocal e
        real = e
        e = Asm()
        fn()
        lines = [i.text for i in e.lines]
        e = real
        return lines

    def xlane_ops(x, op):
        ops = []
        for sw in ("v_permlane32_swap_b32", "v_permlane16_swap_b32"):
            ops += [T(f"v_mov_b32 {tmp}, {x}"), T(f"{sw} {x}, {tmp}"), T(f"{op} {x}, {x}, {tmp}")]
        return ops

    def weave(mf, mem, valu):
        n = len(mf); dm = dv = 0
        for i, mo in enumerate(mf):
            mo()
            um = (len(mem) * (i + 1) + n - 1) // n
            uv = (len(valu) * (i + 1) + n - 1) // n
            run(mem[dm:um]); run(valu[dv:uv]); dm, dv = um, uv

    def qfix_ops(t, L):
        Q = Qt[t]
        a, b, x = 8 * L, 8 * L + 4, (24 if L == 0 else 8 * L - 4)
        ops = [T(f"v_mov_b32_dpp {Q(x+k)}, {Q(b+k)} row_ror:8 row_mask:0xf bank_mask:0xf") for k in range(4)]
        ops += [T(f"v_mov_b32_dpp {Q(x+k)}, {Q(a+k)} row_ror:8 row_mask:0xf bank_mask:0x3") for k in range(4)]
        ops += [T(f"v_mov_b32_dpp {Q(a+k)}, {Q(b+k)} quad_perm:[0,1,2,3] row_mask:0xf bank_mask:0xc") for k in range(4)]
        return ops

    def scores(t, mem=()):
        S, Q = Ss[t & 1], Qt[t]
        qop = [Q(0, 4), Q(24, 4), Q(8, 4), Q(4, 4), Q(16, 4), Q(12, 4)]
        mem = list(mem)
        run(qfix_ops(t, 0))
        for L in range(3):
            mf = []
            for s in (2 * L, 2 * L + 1):
                for u in range(6):
                    a_op = Kt[t + u](4*s, 4) if u < 5 else KG(4*s, 4)
                    c = B(4*u, 4) if s == 0 else S(4*u, 4)
                    mf.append(T(f"v_mfma_f32_16x16x32_bf16 {S(4*u,4)}, {a_op}, {qop[s]}, {c}"))
            part = mem[(len(mem) * L) // 3:(len(mem) * (L + 1)) // 3]
            weave(mf, part, qfix_ops(t, L + 1) if L < 2 else [])

    def softmax(par):
        S, P = Ss[par], Ps[par]
        cut = 8 if par else 2
        pd = lambda k: P(cut) if k == 10 else (P(k) if k < cut else P(k + 2))
        e(f"v_mov_b32 {P(cut+1)}, 0")
        e(f"v_max3_f32 {m}, {S(0)}, {S(1)}, {S(2)}")
        e(f"v_max3_f32 {l}, {S(3)}, {S(4)}, {S(5)}")
        for k in range(6, 22, 4):
            e(f"v_max3_f32 {m}, {m}, {S(k)}, {S(k+1)}")
            e(f"v_max3_f32 {l}, {l}, {S(k+2)}, {S(k+3)}")
        e(f"v_max_f32 {m}, {m}, {l}")
        run(xlane_ops(m, "v_max_f32"))
        e(f"v_mul_f32 {m}, s49, {m}")
        for k in range(22):
            e(f"v_fma_f32 {S(k)}, {S(k)}, s49, -{m}")
        for k in range(22):
            e(f"v_exp_f32 {S(k)}, {S(k)}")
            if k == 3:
                e(f"v_add_f32 {l}, {S(0)}, {S(1)}")
            elif k == 5:
                e(f"v_add_f32 {l2}, {S(2)}, {S(3)}")
            elif k > 5:
                d = l if k % 2 == 0 else l2
                e(f"v_add_f32 {d}, {d}, {S(k-2)}")
        e(f"v_add_f32 {l}, {l}, {S(20)}")
        e(f"v_add_f32 {l2}, {l2}, {S(21)}")
        e(f"v_add_f32 {l}, {l}, {l2}")
        run(xlane_ops(l, "v_add_f32"))
        e(f"v_rcp_f32 {l}, {l}")
        for k in range(11):
            e(f"v_mul_f32 {S(2*k)}, {S(2*k)}, {l}")
            e(f"v_mul_f32 {S(2*k+1)}, {S(2*k+1)}, {l}")
            if k > 0:
                e(f"v_cvt_pk_bf16_f32 {pd(k-1)}, {S(2*k-2)}, {S(2*k-1)}")
        e(f"v_cvt_pk_bf16_f32 {pd(10)}, {S(20)}, {S(21)}")

    ASTEP = 1024 if r128 else 128

    def job_reads(j):
        F = Fb[j % D]
        ops = []
        tag = f"j{j}"
        if j < 8:
            base = (j % 4) * 2 * TILEB
            for i in range(3):
                ops.append(T(f"ds_read_b64_tr_b16 {F(4*i,2)}, {V(vGV+i if j < 4 else vVD+i)} offset:{base}", tag))
                ops.append(T(f"ds_read_b64_tr_b16 {F(4*i+2,2)}, {V(vGV+i if j < 4 else vVD+i)} offset:{base+TILEB}", tag))
        else:
            Tn = j - 8
            a, b = Tn >> 2, Tn & 3
            for u, slot in ((0, 0), (-1, 1), (1, 3), (2, 4), (3, 5), (4, 6), (5, 2)):
                if u >= 0:
                    ops.append(T(f"ds_read_b64_tr_b16 {F(2*slot,2)}, {V(vVR+b)} offset:{ASTEP*a + TILEB*u}", tag))
                else:
                    ops.append(T(f"ds_read_b64_tr_b16 {F(2*slot,2)}, {V(vVG)} offset:{8192+32*Tn}", tag))
        return ops

    def acc(Tn, odd):
        return R("v", O.b + 8 * (Tn % 4) + 4 * odd)

    def job_mfmas(j):
        F = Fb[j % D]
        if j < 8:
            return [T(f"v_mfma_f32_16x16x32_bf16 {OG(4*i,4)}, {F(4*i,4)}, {PG(4*j,4)}, " + ("0" if j == 0 else OG(4*i, 4)))
                    for i in range(3)]
        mf = []
        for ks in range(3):
            for odd in range(2):
                off = (0, 6, 10)[ks] if not odd else (6, 10, 2)[ks]
                d = acc(j - 8, odd)
                mf.append(T(f"v_mfma_f32_16x16x32_bf16 {d(0,4)}, {F(off,4)}, {Ps[odd](4*ks,4)}, " + ("0" if ks == 0 else d(0, 4))))
        return mf

    def cvt_ops(Tn):
        ops = []
        for odd in range(2):
            d = acc(Tn, odd)
            ops += [T(f"v_cvt_pk_bf16_f32 {d(0)}, {d(0)}, {d(1)}"), T(f"v_cvt_pk_bf16_f32 {d(1)}, {d(2)}, {d(3)}")]
        return ops

    def stage_ops(Tn):
        return [T(f"ds_write_b64 {V(vOW+(Tn&3))}, {acc(Tn, odd)(0,2)} offset:{2048*odd}", "ow") for odd in range(2)]

    quads = lambda r, n: [R(r.f, r.b + 4 * i) for i in range(n)]
    HB = [R("v", 116)] + quads(Kt[1], 6) + quads(R("a", 244), 3) + quads(R("a", 16), 2)

    def readback_ops(c):
        return [T(f"ds_read_b128 {HB[4*c+i](0,4)}, {V(vOR)} offset:{1024*i}", f"or{c}_{i}") for i in range(4)]

    def store_ops(c, first):
        ops = []
        for i in range(4):
            va = vSTM if (first and i == 0) else vST
            txt = f"buffer_store_dwordx4 {HB[4*c+i](0,4)}, {V(va)}, {SO}, s50 offen offset:{128*c} {sf}"
            ops.append(lambda i=i, txt=txt: (e(f"s_add_i32 s50, s57, {3072*i}"), e.wait(lg=f"or{c}_{i}"), e(txt, tag="O")))
        return ops

    def do_job(j, last, mem, valu):
        rd = job_reads(j - 1 + D) if (j >= 1 and j - 1 + D <= last) else []
        mm = []
        mem = list(mem)
        while rd or mem:
            if rd:
                mm.append(rd.pop(0))
            if mem:
                mm.append(mem.pop(0))
        e.wait(lg=f"j{j}")
        weave(job_mfmas(j), mm, list(valu))

    ncall = [0]

    def pv_pair():
        def cond_store(c):
            sl, sv = list(e.lg), list(e.vm)
            lab = f"L_hold{c}" if subs else f"L_hold{c}_{ncall[0]}"
            e("s_cmp_eq_u32 s56, 0")
            e(f"s_cbranch_scc1 {lab}")
            run(store_ops(c, False))
            e.label(lab)
            e.lg[:] = sl
            if ncall[0] == 0:
                e.vm[:] = sv
        for Tn in range(12):
            mem = stage_ops(Tn - 3) if Tn >= 3 else []
            if Tn in (6, 10):
                mem = mem + readback_ops((Tn - 6) // 4)
            do_job(8 + Tn, 19, mem, cvt_ops(Tn - 2) if Tn >= 2 else [])
            if Tn in (7, 11):
                cond_store((Tn - 7) // 4)
        run(stage_ops(9))
        run(cvt_ops(10)); run(cvt_ops(11))
        run(stage_ops(10)); run(stage_ops(11))
        run(readback_ops(2))
        cond_store(2)
        ncall[0] += 1

    prefetch_code()
    cst = capture(consts_early) + [t.replace("s44", "s48") for t in capture(consts_rest)]
    cuts_c = [0, 0, 0] + [(len(cst) * k) // 8 for k in range(9)]
    for k, g in enumerate(groups):
        load_group(g, vKA, SK, lf, "K")
        if k == 3:
            load_g()
        lo, hi = cuts_c[k], cuts_c[k + 1]
        while hi < len(cst) and hi > lo and cst[hi - 1].startswith(("s_cmp", "s_add_u32 s16", "s_add_u32 s20")):
            hi += 1
            cuts_c[k + 1] = hi
        for t in cst[lo:hi]:
            e(t)
    load_q(0)
    for t in cst[cuts_c[10]:]:
        e(t)
    load_q(1)
    edge_bias(0)
    stamp()
    e.wait(vm="K")
    e("s_barrier")
    for s in range(6):
        e(f"ds_read_b128 {QG(4*s,4)}, {V(vGR)} offset:{7168+64*s}", tag="qg")
    for u in (2, 3, 4, 5, 0, 1, 6, 7):
        for s in range(6):
            e(f"ds_read_b128 {Kt[u](4*s,4)}, {V(vCR+(s&1))} offset:{u*TILEB + 1024*(s>>1)}", tag="kc")
    for s in range(6):
        e(f"ds_read_b128 {KG(4*s,4)}, {V(vGR)} offset:{6144+64*s}", tag="kg")
    e.wait(lg="all")
    e("s_barrier")
    load_v(nv0)
    stamp()
    load_v(1)
    e.wait(lg="all")
    for s in range(6):
        for u in range(4):
            c = "0" if s == 0 else SG(4*u, 4)
            e(f"v_mfma_f32_16x16x32_bf16 {SG(4*u,4)}, {Kt[2+u](4*s,4)}, {QG(4*s,4)}, {c}")
    load_v(1)
    e(f"v_mov_b32 {l2}, 0")
    e(f"v_mov_b32 {V(vT+4)}, {XCH+512}")
    e("s_lshl_b32 s51, s3, 2")
    e(f"v_add_u32 {V(vT+11)}, s51, {V(vMX)}")
    e(f"v_max3_f32 {m}, {SG(0)}, {SG(1)}, {SG(2)}")
    for k in range(3, 15, 2):
        e(f"v_max3_f32 {m}, {m}, {SG(k)}, {SG(k+1)}")
    e(f"v_max_f32 {m}, {m}, {SG(15)}")
    run(xlane_ops(m, "v_max_f32"))
    e(f"ds_write_b32 {V(vT+11)}, {m}")
    e(f"ds_write_b32 {V(vT+4)}, {l2}")
    e.wait(vm="Q0")
    load_v(1)
    scores(0)
    load_v(1)
    edge_bias(1)
    call("F_sm0", lambda: softmax(0))
    stamp()
    e.wait(vm="Q1")
    load_v(1)
    scores(1)
    load_v(1)
    call("F_sm1", lambda: softmax(1))
    load_v(1)
    stamp()
    e.wait(lg="all")
    e("s_barrier")
    e(f"ds_read_b128 {V(vT+4,4)}, {V(vMX)}", tag="mx")
    load_v(1)
    e.wait(lg="all")
    e(f"v_max3_f32 {m}, {V(vT+4)}, {V(vT+5)}, {V(vT+6)}")
    e(f"v_max_f32 {m}, {m}, {V(vT+7)}")
    e(f"v_mul_f32 {V(vT+8)}, s49, {m}")
    for k in range(16):
        e(f"v_fma_f32 {SG(k)}, {SG(k)}, s49, -{V(vT+8)}")
    for k in range(16):
        e(f"v_exp_f32 {SG(k)}, {SG(k)}")
    e(f"v_add_f32 {l}, {SG(0)}, {SG(1)}")
    for k in range(2, 16):
        e(f"v_add_f32 {l}, {l}, {SG(k)}")
    for k in range(8):
        e(f"v_cvt_pk_bf16_f32 {QG(k)}, {SG(2*k)}, {SG(2*k+1)}")
    run(xlane_ops(l, "v_add_f32"))
    e(f"ds_write_b128 {V(vPW)}, {QG(0,4)} offset:6144")
    e(f"ds_write_b128 {V(vPW)}, {QG(4,4)} offset:7168")
    e(f"ds_write_b32 {V(vT+11)}, {l} offset:256")
    load_v(10)
    load_q(2)
    for i in range(3):
        e(f"v_add_u32 {V(vVD+i)}, {8*TILEB}, {V(vGV+i)}")
    edge_bias(2)
    e("s_mov_b32 s56, 0")
    stamp()
    e.wait(vm="V", lg="all")
    e("s_barrier")
    stamp()
    fstamp(True)
    fstamp()
    e(f"ds_read_b128 {PG(0,4)}, {V(vPR)} offset:0", tag="pg")
    run(job_reads(0))
    for ks in range(1, 8):
        e(f"ds_read_b128 {PG(4*ks,4)}, {V(vPR)} offset:{(ks//2)*SCRB + (ks%2)*1024}", tag="pg")
    e(f"ds_read_b128 {V(vT+4,4)}, {V(vMX)} offset:256", tag="lx")
    for j in range(1, D):
        run(job_reads(j))
    fstamp()
    q3 = load_q_ops(3)
    if not q3w:
        run(q3); q3 = []
    fstamp()
    for j in range(8):
        valu = []
        if j == 4:
            valu = [T(f"v_add_f32 {V(vT+9)}, {V(vT+4)}, {V(vT+5)}"), T(f"v_add_f32 {V(vT+9)}, {V(vT+9)}, {V(vT+6)}"),
                    T(f"v_add_f32 {V(vT+9)}, {V(vT+9)}, {V(vT+7)}")]
        do_job(j, 19, q3[j:j+1], valu)
    fstamp()
    fstamp()
    entry_lg = [t for t in e.lg if t in ("j8", "j9", "j10")]
    e.lg[:] = entry_lg
    call("F_pv", pv_pair)
    stamp()
    fstamp()
    e("s_mov_b32 s57, s42")
    held = [o for c in range(3) for o in store_ops(c, True)]
    cuts = [sum(pace[:k]) for k in range(len(pace) + 1)]
    hs = lambda k: held[cuts[k]:cuts[k+1]]
    assert cuts[-1] == 12
    e.wait(vm="Q2")
    parts = [T(f"buffer_store_dwordx2 {V(vT+8,2)}, {V(vML)}, {SW}, 0 offen sc1", "part")]
    parts += [T(f"buffer_store_dwordx4 {OG(4*i,4)}, {V(vWS)}, {SW}, 0 offen offset:{64*i} sc1", "part") for i in range(3)]
    scores(2, parts + hs(0) + hs(1))
    run(hs(2))
    stamp()
    fstamp()
    edge_bias(3)
    call("F_sm0", lambda: softmax(0))
    stamp()
    fstamp()
    e.wait(vm=["Q3", "part"])
    e(f"v_mov_b32 {V(vT+5)}, 1")
    e(f"v_mov_b32 {V(vT+4)}, {XCH+512}")
    e("s_mov_b64 exec, 1")
    e(f"ds_add_rtn_u32 {V(vPR)}, {V(vT+4)}, {V(vT+5)}", tag="cnt")
    e("s_mov_b64 exec, -1")
    for b in range(4):
        e(f"v_add_u32 {V(vVR+b)}, {2*TILEB}, {V(vVR+b)}")
    e.wait(lg="all")
    e(f"v_readfirstlane_b32 s61, {V(vPR)}")
    e("s_cmp_lg_u32 s61, 3")
    e("s_cbranch_scc1 L_nosig")
    e("s_lshl_b32 s44, s40, 2")
    e(f"v_mov_b32 {V(vT+4)}, s44")
    e(f"v_mov_b32 {V(vPW)}, 1")
    e("s_mov_b64 exec, 1")
    sv = list(e.vm)
    e(f"buffer_atomic_add {V(vPW)}, {V(vT+4)}, {SD}, 0 offen sc0", tag="atom")
    e.vm[:] = sv + ["sigmark"]
    e("s_mov_b64 exec, -1")
    e.label("L_nosig")
    run(hs(3))
    pre = [o for j in range(8, 8 + D - 1) for o in job_reads(j)]
    mix = list(pre)
    for k, o in enumerate(hs(4)):
        mix.insert((len(pre) * (2 * k + 1)) // (2 * len(hs(4))) + k, o)
    scores(3, mix)
    run(hs(5))
    stamp()
    fstamp()
    call("F_sm1", lambda: softmax(1))
    run(hs(6))
    stamp()
    fstamp()
    CB = R("a", 96)
    check_arrival(e, CB, SW, vL, vT)
    e("s_mov_b32 s56, 1")
    e(f"s_add_i32 s57, s42, {2*TILEB}")
    assert e.lg == entry_lg, (e.lg, entry_lg)
    call("F_pv", pv_pair)
    stamp()
    fstamp()
    fstamp(True)
    e("s_cmp_lg_u32 s61, 7")
    e("s_cbranch_scc1 L_fin")
    e("s_waitcnt vmcnt(12)")
    W = R("v", 72)
    for k in range(16):
        e(f"v_accvgpr_read_b32 {W(k)}, {CB(48+k)}")
    e(f"v_max3_f32 {m}, {W(0)}, {W(2)}, {W(4)}")
    e(f"v_max3_f32 {m}, {m}, {W(6)}, {W(8)}")
    e(f"v_max3_f32 {m}, {m}, {W(10)}, {W(12)}")
    e(f"v_max_f32 {m}, {m}, {W(14)}")
    for s in range(8):
        e(f"v_sub_f32 {W(2*s)}, {W(2*s)}, {m}")
    for s in range(8):
        e(f"v_exp_f32 {W(2*s)}, {W(2*s)}")
    e(f"v_mul_f32 {l}, {W(0)}, {W(1)}")
    for s in range(1, 8):
        e(f"v_fmac_f32 {l}, {W(2*s)}, {W(2*s+1)}")
    e(f"v_rcp_f32 {l}, {l}")
    X = R("v", 120); Y = R("v", 128)
    for s in range(8):
        for k in range(6):
            e(f"v_accvgpr_read_b32 {Y(k)}, {CB(6*s+k)}")
        for k in range(6):
            if s == 0:
                e(f"v_mul_f32 {X(k)}, {W(0)}, {Y(k)}")
            else:
                e(f"v_fmac_f32 {X(k)}, {W(2*s)}, {Y(k)}")
    for k in range(6):
        e(f"v_mul_f32 {X(k)}, {X(k)}, {l}")
    for k in range(3):
        e(f"v_cvt_pk_bf16_f32 {X(k)}, {X(2*k)}, {X(2*k+1)}")
    e(f"v_mul_u32_u24 {tmp}, 12, {V(vL)}")
    e(f"buffer_store_dwordx3 {X(0,3)}, {tmp}, {SO}, 0 offen {sf}")
    e.label("L_fin")
    if stamps:
        e("s_waitcnt vmcnt(0)")
        stamp()
        e("s_load_dwordx2 s[20:21], s[0:1], 56")
        e("s_waitcnt lgkmcnt(0)")
        e("s_mov_b32 s22, 0x1000000")
        e("s_lshl_b32 s44, s2, 2")
        e("s_add_u32 s44, s44, s3")
        e("s_lshl_b32 s44, s44, 6")
        e("s_add_u32 s44, s44, 0x100000")
        e(f"v_mov_b32 {V(vT+1)}, 0")
        for k in range(nst[0]):
            e(f"v_mov_b32 {V(vT)}, s{64+2*k}")
            e(f"buffer_store_dword {V(vT)}, {V(vT+1)}, {SW}, s44 offen offset:{4*k}")
            e("s_nop 1")
    e.label("L_end")
    e("s_endpgm")
    text = e.finish() + "L_codeend:\n"
    full = HEADER.format(lds=LDS_TOTAL, kn=KN) + text + FOOTER.format(kn=KN)
    if pf:
        full = full.replace("CODE_LAST", str(code_size(full.replace("CODE_LAST", "0x1234"), KN) - 128))
    return full


def check_arrival(e, CB, SW, vL, vT):
    e("s_cmp_lg_u32 s61, 3")
    e("s_cbranch_scc1 L_notlast")
    cnt = len(e.vm) - 1 - e.vm.index("sigmark")
    e(f"s_waitcnt vmcnt({cnt})")
    e("v_readfirstlane_b32 s61, v28")
    e("s_cmp_lg_u32 s61, 7")
    e("s_cbranch_scc1 L_notlast")
    sv = list(e.vm)
    e(f"v_lshrrev_b32 {V(vT+4)}, 5, {V(vL)}")
    e(f"v_and_b32 {V(vT+5)}, 31, {V(vL)}")
    e(f"v_mul_u32_u24 {V(vT+5)}, 24, {V(vT+5)}")
    e(f"v_mul_u32_u24 {V(vT+6)}, 768, {V(vT+4)}")
    e(f"v_add_u32 {V(vT+5)}, {V(vT+5)}, {V(vT+6)}")
    e(f"v_lshlrev_b32 {V(vT+4)}, 6, {V(vT+4)}")
    e("s_mov_b32 s50, 12288")
    for k in range(4):
        e(f"buffer_load_dwordx4 {CB(48+4*k,4)}, {V(vT+4)}, {SW}, s50 offen offset:{16*k} sc1")
    for s in range(8):
        e(f"s_mov_b32 s50, {s*1536}")
        e(f"buffer_load_dwordx4 {CB(6*s,4)}, {V(vT+5)}, {SW}, s50 offen sc1")
        e(f"buffer_load_dwordx2 {CB(6*s+4,2)}, {V(vT+5)}, {SW}, s50 offen offset:16 sc1")
    e.vm[:] = sv
    e.label("L_notlast")


if __name__ == "__main__":
    import ast
    out = sys.argv[1]
    kw = {}
    for a in sys.argv[2:]:
        k, v = a.split("=", 1)
        try:
            kw[k] = ast.literal_eval(v)
        except Exception:
            kw[k] = v
    open(out, "w").write(gen(**kw))
```

```python
import re

REG_RE = re.compile(r"(?<![\w.])([vas])(?:(\d+)|\[(\d+):(\d+)\])(?![\w])")


def regs_of(op):
    out = set()
    for m in REG_RE.finditer(op):
        k = m.group(1)
        if m.group(2) is not None:
            out.add((k, int(m.group(2))))
        else:
            for i in range(int(m.group(3)), int(m.group(4)) + 1):
                out.add((k, i))
    if re.search(r"\bvcc\b", op):
        out.add(("vcc", 0))
    if re.search(r"\bm0\b", op):
        out.add(("m0", 0))
    if re.search(r"\bexec\b", op):
        out.add(("exec", 0))
    return out


TRANS = ("v_exp_f32", "v_log_f32", "v_rcp_f32", "v_rsq_f32", "v_sqrt_f32")


class Ins:
    def __init__(self, text):
        self.text = text
        t = text.split(";")[0].strip()
        self.label = t.endswith(":")
        self.mn = t.split()[0] if t else ""
        rest = t[len(self.mn):].strip()
        self.ops = [o.strip() for o in rest.split(",")] if rest else []
        self.r, self.w = set(), set()
        self.kind = "other"
        self.srcc = set()
        self.states = 1
        mn = self.mn
        R = [regs_of(o) for o in self.ops]
        if self.label or not mn or mn.startswith("."):
            self.kind = "none"
            self.states = 0
        elif mn == "s_nop":
            self.kind = "nop"
            self.states = int(self.ops[0]) + 1
        elif mn.startswith("v_mfma"):
            self.kind = "mfma"
            self.w = R[0]
            self.ab = R[1] | R[2]
            self.srcc = R[3]
            self.r = self.ab | self.srcc
            self.passes = 4 if "16x16" in mn else 8
        elif mn.startswith("v_swap"):
            self.kind = "valu"
            self.w = R[0] | R[1]
            self.r = R[0] | R[1]
        elif mn.startswith("v_permlane"):
            self.kind = "valu"
            self.perm = True
            self.w = R[0] | R[1]
            self.r = R[0] | R[1]
        elif mn.startswith("v_cmp"):
            self.kind = "valu"
            self.w = R[0]
            self.r = set().union(*R[1:])
        elif mn.startswith("v_readfirstlane") or mn.startswith("v_readlane"):
            self.kind = "valu"
            self.rl = True
            self.w = R[0]
            self.r = set().union(*R[1:])
        elif mn.startswith("v_"):
            self.kind = "valu"
            self.w = R[0]
            self.r = set().union(*R[1:]) if len(R) > 1 else set()
            if mn.startswith(("v_fmac", "v_pk_fmac")):
                self.r |= R[0]
            if "_co_" in mn:
                self.w |= R[1]
        elif mn.startswith("ds_"):
            self.kind = "ds"
            if mn.startswith("ds_read") or "_rtn_" in mn:
                self.w = R[0]
                self.r = set().union(*R[1:])
            else:
                self.r = set().union(*R)
        elif mn.startswith("buffer_") or mn.startswith("global_"):
            self.kind = "vmem"
            is_lds = re.search(r"\blds\b", t) is not None
            if is_lds:
                self.r = set().union(*R) | {("m0", 0)}
                self.ldsdma = True
            elif "load" in mn:
                self.w = R[0]
                self.r = set().union(*R[1:])
            elif "atomic" in mn:
                self.r = set().union(*R)
                if re.search(r"\bsc0\b", t):
                    self.w = R[0]
            elif "store" in mn:
                self.r = set().union(*R)
                if "x3" in mn or "x4" in mn:
                    self.widedata = R[0]
            else:
                self.r = set().union(*R) if R else set()
        elif mn.startswith("s_"):
            self.kind = "salu"
            if mn.startswith(("s_cmp", "s_bitcmp", "s_setpc", "s_cbranch", "s_branch", "s_waitcnt", "s_barrier", "s_endpgm", "s_setprio", "s_sleep")):
                self.r = set().union(*R) if R else set()
            else:
                self.w = R[0]
                self.r = set().union(*R[1:]) if len(R) > 1 else set()
                if "saveexec" in mn:
                    self.w = self.w | {("exec", 0)}


def need(prod, cons):
    n = 0
    pk, ck = prod.kind, cons.kind
    vw = {x for x in prod.w if x[0] in "va" and x[0] != "vcc"}
    sw = {x for x in prod.w if x[0] in ("s", "vcc")}
    if pk == "valu":
        if ck == "mfma" and vw & cons.r:
            n = max(n, 2)
        if ck == "valu" and getattr(cons, "perm", False) and vw & cons.r:
            n = max(n, 2)
        if ck == "valu" and "dpp" in cons.text and vw & cons.r:
            n = max(n, 2)
        if ck == "valu" and getattr(cons, "rl", False) and vw & cons.r:
            n = max(n, 1)
        if prod.mn.startswith(TRANS) and ck == "valu" and vw & cons.r:
            n = max(n, 1)
        if sw & cons.r:
            if ck == "valu":
                n = max(n, 4 if getattr(cons, "rl", False) else 2)
            if ck == "vmem":
                n = max(n, 5)
            if ck == "salu":
                n = max(n, 1)
        if ("exec", 0) in prod.w and ck in ("valu", "mfma"):
            n = max(n, 5)
    if pk == "salu":
        if ("m0", 0) in prod.w and getattr(cons, "ldsdma", False):
            n = max(n, 1)
    if pk == "mfma":
        P = prod.passes
        far = {4: 8, 8: 12}[P]
        if ck == "mfma":
            if prod.w & cons.ab:
                n = max(n, far)
            if prod.w & cons.srcc and prod.w != cons.srcc:
                n = max(n, {4: 6, 8: 10}[P])
            if prod.w & cons.w and prod.w != cons.srcc:
                n = max(n, far)
        elif ck in ("valu", "ds", "vmem"):
            if prod.w & (cons.r | cons.w):
                n = max(n, far)
            if ck == "valu" and prod.srcc & cons.w:
                n = max(n, {4: 3, 8: 7}[P])
            if ck in ("ds", "vmem") and prod.srcc & cons.w:
                n = max(n, {4: 3, 8: 7}[P])
    if pk == "vmem" and getattr(prod, "widedata", None):
        if prod.widedata & cons.w:
            n = max(n, 2)
    return n


class Asm:
    def __init__(self):
        self.lines = []
        self.vm = []
        self.lg = []

    def __call__(self, text, tag=None):
        for t in text.split("\n"):
            t = t.strip()
            if not t:
                continue
            i = Ins(t)
            self.lines.append(i)
            if i.kind == "vmem" and not i.mn.startswith(("buffer_inv", "buffer_wbl2")):
                self.vm.append(tag)
            elif i.kind == "ds":
                self.lg.append(tag)

    def call(self, name, fn, link="s[94:95]"):
        main = self.lines
        self.lines = []
        fn()
        self.lines.append(Ins(f"s_setpc_b64 {link}"))
        body = self.lines
        self.lines = main
        subs = self.__dict__.setdefault("subs", {})
        if name in subs:
            assert [i.text for i in subs[name]] == [i.text for i in body], "subroutine text differs between calls: " + name
        else:
            subs[name] = body
        c = Ins(f"s_call_b64 {link}, {name}")
        c.callee = name
        main.append(c)

    def label(self, name):
        self.lines.append(Ins(name + ":"))

    def comment(self, c):
        self.lines.append(Ins("; " + c))

    def _count(self, q, tags):
        if not isinstance(tags, (list, tuple, set)):
            tags = [tags]
        idx = [k for k, t in enumerate(q) if t in tags]
        if not idx:
            return None
        last = max(idx)
        n = len(q) - 1 - last
        del q[: last + 1]
        return n

    def wait(self, vm=None, lg=None, slack_vm=0):
        parts = []
        if vm is not None:
            if vm == "all":
                n = 0
                self.vm.clear()
            else:
                n = self._count(self.vm, vm)
            if n is not None:
                n = max(0, n - slack_vm)
                parts.append(f"vmcnt({min(n, 63)})")
        if lg is not None:
            if lg == "all":
                n = 0
                self.lg.clear()
            else:
                n = self._count(self.lg, lg)
            if n is not None:
                parts.append(f"lgkmcnt({min(n, 15)})")
        if parts:
            self.lines.append(Ins("s_waitcnt " + " ".join(parts)))

    def cap(self, n):
        if n is not None and len(self.vm) > n:
            del self.vm[: len(self.vm) - n]
            self.lines.append(Ins(f"s_waitcnt vmcnt({n})"))

    def finish(self):
        subs = self.__dict__.get("subs", {})
        self.done_subs = {}
        for name, body in subs.items():
            self.done_subs[name] = self._pass(body)
        out, pending = self._pass(self.lines)
        self.out = out
        fmt = lambda L: "\n".join(("" if i.label else "    ") + i.text for i in L) + "\n"
        text = fmt(out)
        for name, (body, _) in self.done_subs.items():
            text += name + ":\n" + fmt(body)
        return text

    def _pass(self, L):
        out = []
        labels = {}
        pending = {}
        for ins in L:
            if ins.label:
                out.append(ins)
                labels[ins.mn[:-1]] = len(out) - 1
                continue
            if ins.kind == "none":
                out.append(ins)
                continue
            req = self._required(out, len(out) - 1, ins, pending, 0)
            callee = getattr(ins, "callee", None)
            if callee:
                dist = 1
                for h in self.done_subs[callee][0]:
                    if h.kind == "none":
                        continue
                    if dist >= 21:
                        break
                    req = max(req, self._required(out, len(out) - 1, h, pending, dist))
                    if h.mn.startswith(("s_cbranch", "s_branch")):
                        continue
                    dist += h.states
            while req > 0:
                k = min(req, 16)
                out.append(Ins(f"s_nop {k-1}"))
                req -= k
            out.append(ins)
            if ins.mn.startswith(("s_cbranch", "s_branch")):
                tgt = ins.ops[0]
                assert tgt not in labels, "backward branch not supported by hazard pass: " + tgt
                pending.setdefault(tgt, []).append(len(out) - 1)
        return out, pending

    def _required(self, out0, start, cons, pending0, dist0):
        best = 0
        stack = [(out0, pending0, start, dist0, None)]
        seen = set()
        while stack:
            out, pending, k, dist, cont = stack.pop()
            while dist < 21:
                if k < 0:
                    if cont is None:
                        break
                    out, pending, k, cont = cont
                    continue
                key = (id(out), k, dist)
                if key in seen:
                    break
                seen.add(key)
                p = out[k]
                if p.label:
                    for b in pending.get(p.mn[:-1], []):
                        stack.append((out, pending, b, dist, cont))
                    kk = k - 1
                    while kk >= 0 and out[kk].kind == "none" and not out[kk].label:
                        kk -= 1
                    if kk >= 0 and out[kk].mn in ("s_branch", "s_endpgm"):
                        break
                    k -= 1
                    continue
                callee = getattr(p, "callee", None)
                if callee:
                    body, bp = self.done_subs[callee]
                    plain = Ins(p.text)
                    cont = ([plain], {}, 0, (out, pending, k - 1, cont))
                    out, pending, k = body, bp, len(body) - 1
                    continue
                if p.kind != "none":
                    n = need(p, cons)
                    if n - dist > best:
                        best = n - dist
                    dist += p.states
                k -= 1
        return best


def code_size(text, kn):
    import subprocess, tempfile, os
    d = tempfile.mkdtemp()
    open(d + "/k.s", "w").write(text)
    r = subprocess.run(["clang", "-x", "assembler", "-target", "amdgcn-amd-amdhsa", "-mcpu=gfx950", "-c", d + "/k.s", "-o", d + "/k.o"], capture_output=True, text=True)
    assert r.returncode == 0, r.stderr[:3000]
    o = subprocess.run(["llvm-objdump", "-t", d + "/k.o"], capture_output=True, text=True).stdout
    a = {}
    for line in o.splitlines():
        p = line.split()
        if p and p[-1] in (kn, "L_codeend"):
            a[p[-1]] = int(p[0], 16)
    return a["L_codeend"] - a[kn]
```

```python
import sys, struct
from asmdsl import Asm, code_size

KN = "standalone__global_local_windowed_global_tokens__prompt_kernel"
HEADB = 786432
TILEB = 6144
VIMG = 320 * 384
SCRB = 9216
XCH = VIMG + 4 * SCRB
LDS_TOTAL = XCH + 1024
SCALE = 192 ** -0.5 * 1.4426950408889634
BIG = 0xF1000000


def f2u(x):
    return struct.unpack("<I", struct.pack("<f", x))[0]


HEADER = """; Windowed (|i-j|<=32) + 2 global tokens attention, B=1 H=32 S=2048 D=192, bf16.
; @launch grid=(256,1,1) block=(256,1,1) lds={lds}
.amdgcn_target "amdgcn-amd-amdhsa--gfx950"
.text
.globl {kn}
.p2align 8
.type {kn},@function
{kn}:
"""
FOOTER = """
.section .rodata,"a"
.p2align 6
.amdhsa_kernel {kn}
  .amdhsa_next_free_vgpr 512
  .amdhsa_next_free_sgpr 100
  .amdhsa_accum_offset 256
  .amdhsa_group_segment_fixed_size 0
  .amdhsa_kernarg_size 64
  .amdhsa_user_sgpr_count 2
  .amdhsa_user_sgpr_kernarg_segment_ptr 1
  .amdhsa_system_sgpr_workgroup_id_x 1
  .amdhsa_float_denorm_mode_32 3
.end_amdhsa_kernel
"""


def V(i, n=1):
    return f"v{i}" if n == 1 else f"v[{i}:{i+n-1}]"


def A(i, n=1):
    return f"a{i}" if n == 1 else f"a[{i}:{i+n-1}]"


class R:
    def __init__(self, f, b):
        self.f, self.b = f, b

    def __call__(self, off=0, n=1):
        i = self.b + off
        return f"{self.f}{i}" if n == 1 else f"{self.f}[{i}:{i+n-1}]"


def gen(lf="nt", sf="sc1", stamps=False, gf="", pf=True, qf=None, vf=None, pfall=False, r128=True, nv0=4, chk=3, vcap2=None, imajor=True, strip=None, nohalo=False, sf0=None, wb=None, vsched=(1, 1, 1, 1, 1, 1, 1, 1), subs=True, fine=False, pace=(0, 0, 0, 0, 4, 4, 4), sync=5, q3pos=1, q2in=True, kcap=9, vcap=None, q1late=False, probe=False, gearly=True, khalf=False, lite=(2, 6, 9, 12, 13), q3split=0, pf1=True, pfpos=1, zedge=True, kcapE=None):
    e = Asm()
    qf = lf if qf is None else qf
    vf = lf if vf is None else vf
    sf0 = sf if sf0 is None else sf0
    SQ, SK, SV, SO, SW, SD = "s[4:7]", "s[8:11]", "s[12:15]", "s[16:19]", "s[20:23]", "s[24:27]"
    vL, vLin, vKA, vLow = 0, 1, 2, 3
    vCW, vCR, vOW, vOR, vQA, vQB, vVR, vVG = 4, 7, 9, 13, 14, 15, 16, 20
    vVD, vGR, vGV, vPW, vPR, vMX, vWS, vML = 21, 24, 25, 28, 29, 30, 31, 32
    vJ, vG4, vBig = 33, 34, 35
    vT = 36
    vST, vSTM = 248, 249
    TRI = [V(4), V(5), V(6), V(190)]
    B = R("v", 48)
    Ss = [R("v", 72), R("v", 96)]
    Ps = [R("v", 120), R("v", 132)]
    O = R("v", 144)
    Kt = [R("a", 24 * u) for u in range(8)]
    KG = R("a", 192)
    Qt = [R("v", 192), R("v", 220), R("v", 192), R("v", 220)]
    Fb = [R("v", 176), R("a", 216), R("a", 230), R("a", 0)]
    D = len(Fb)
    QG = R("v", 144); SG = R("v", 168)
    PG = R("v", 72); OG = R("v", 104)
    m, tmp, l, l2 = V(vT), V(vT + 1), V(vT + 2), V(vT + 3)
    nst = [0]

    def fstamp(real=False):
        if fine:
            k = nst[0]
            e(f"{'s_memrealtime' if real else 's_memtime'} s[{64+2*k}:{65+2*k}]")
            e("s_waitcnt lgkmcnt(0)")
            nst[0] += 1

    seq = [0]

    def stamp():
        seq[0] += 1
        if stamps == "lite" and seq[0] not in ((1, 101, 102, 2, 6, 13) if lite == "k" else lite):
            return
        if stamps and not fine:
            k = nst[0]
            e(f"s_memrealtime s[{64+2*k}:{65+2*k}]")
            e("s_waitcnt lgkmcnt(0)")
            nst[0] += 1

    def T(text, tag=None):
        return lambda: e(text, tag=tag)

    def run(ops):
        for o in ops:
            o()

    def call(name, fn):
        if subs:
            e.call(name, fn)
        else:
            fn()

    e("s_cmp_ge_u32 s2, 256")
    e("s_cbranch_scc1 L_end")
    e("s_load_dwordx2 s[8:9], s[0:1], 8")
    e("s_load_dwordx2 s[4:5], s[0:1], 0")
    e("s_load_dwordx2 s[12:13], s[0:1], 16")
    e("s_load_dwordx2 s[16:17], s[0:1], 40")
    e("s_load_dwordx2 s[24:25], s[0:1], 48")
    e("s_load_dwordx2 s[20:21], s[0:1], 56")
    if stamps:
        e("s_memrealtime s[64:65]")
        nst[0] = 1
    if pf:
        e("s_getpc_b64 s[62:63]")
        e("v_lshlrev_b32 v46, 7, v0")
    e("v_lshrrev_b32 v1, 6, v0")
    e(f"v_and_b32 {V(vL)}, 63, v0")
    e("v_readfirstlane_b32 s3, v1")
    e("s_and_b32 s40, s2, 7")
    e("s_lshr_b32 s41, s2, 3")
    e("s_lshl_b32 s40, s40, 2")
    e("s_lshr_b32 s44, s41, 3")
    e("s_add_u32 s40, s40, s44")
    e("s_and_b32 s41, s41, 7")
    e(f"v_lshlrev_b32 {V(vLin)}, 4, {V(vL)}")
    e(f"s_mul_i32 s45, s40, {HEADB}")
    e("s_lshl_b32 s60, s41, 2")
    e("s_add_u32 s60, s60, s3")
    e(f"s_mul_i32 s42, s60, {4*TILEB}")
    e("s_lshl_b32 s60, s60, 6")
    e(f"s_mul_i32 s43, s3, {SCRB}")
    e(f"s_add_u32 s43, s43, {VIMG}")
    if r128:
        e(f"v_lshrrev_b32 {V(vT)}, 3, {V(vL)}")
        e(f"v_and_b32 {V(vT+1)}, 7, {V(vL)}")
        e(f"v_mul_u32_u24 {V(vT)}, 384, {V(vT)}")
        e(f"v_lshl_add_u32 {V(vST)}, {V(vT+1)}, 4, {V(vT)}")
        e(f"v_lshrrev_b32 {V(vT)}, 3, {V(vL)}")
        e(f"v_lshlrev_b32 {V(vT)}, 4, {V(vT)}")
        e(f"v_xor_b32 {V(vKA)}, {V(vT)}, {V(vST)}")
        e("s_mul_i32 s46, s41, 98304")
        e("s_mul_i32 s47, s3, 3072")
        e(f"s_add_i32 s46, s46, {-32*384}")
        e("s_add_i32 s46, s46, s47")
    e(f"s_mov_b32 s10, {HEADB}")
    e("s_mov_b32 s11, 0x20000")
    e(f"s_mov_b32 s6, {HEADB}")
    e("s_mov_b32 s7, 0x20000")
    e(f"s_mov_b32 s14, {HEADB}")
    e("s_mov_b32 s15, 0x20000")
    e("s_waitcnt lgkmcnt(0)")
    for b in (8, 4, 12):
        e(f"s_add_u32 s{b}, s{b}, s45")
        e(f"s_addc_u32 s{b+1}, s{b+1}, 0")

    def prefetch_code():
        if not pf:
            return
        if pf1:
            e("s_lshr_b32 s50, s2, 3")
            e("s_lshl_b32 s50, s50, 2")
            e("s_add_u32 s50, s50, s3")
            e("s_lshl_b32 s50, s50, 7")
            e("s_min_u32 s50, s50, CODE_LAST")
            e("v_mov_b32 v46, s50")
            sv = list(e.vm)
            e("global_load_dword v47, v46, s[62:63]")
            e.vm[:] = sv
            return
        if not pfall:
            e("s_cmp_ge_u32 s2, 16")
            e("s_cbranch_scc1 L_nopf")
        e("v_min_u32 v46, CODE_LAST, v46")
        sv = list(e.vm)
        e("global_load_dword v47, v46, s[62:63]")
        e.vm[:] = sv
        if not pfall:
            e.label("L_nopf")

    def load_g():
        for off, srd in ((6144, SK), (7168, SQ), (8192, SV)):
            e(f"s_add_u32 m0, s43, {off}")
            e.cap(kcap)
            e(f"buffer_load_dwordx4 {V(vLin)}, {srd}, 0 offen {gf} lds", tag="g")

    def load_q_ops(t):
        e(f"s_add_i32 s44, s42, {t*TILEB}")
        ops = []
        for L in range(3):
            ops.append(T(f"buffer_load_dwordx4 {Qt[t](8*L,4)}, {V(vQA)}, {SQ}, s44 offen offset:{128*L} {qf}", f"Q{t}"))
            ops.append(T(f"buffer_load_dwordx4 {Qt[t](8*L+4,4)}, {V(vQB)}, {SQ}, s44 offen offset:{128*L} {qf}", f"Q{t}"))
        return ops

    def load_q(t, cap=None):
        for o in load_q_ops(t):
            e.cap(cap)
            o()

    groups = [0, 32, 4, 36, 8, 12, 16, 20, 24, 28]
    vnext = [0]

    def load_group(g, va, srd, fl, tag, cols=(0, 1, 2)):
        if nohalo and g in (0, 36):
            return
        e(f"s_add_u32 m0, s47, {g*3072 + 896*cols[0]}")
        e(f"s_add_i32 s44, s46, {g*3072}")
        if g < 4:
            e("s_max_i32 s44, s44, 0")
        if g > 32:
            e(f"s_min_i32 s44, s44, {2040*384}")
        nrec = {SK: "s10", SV: "s14"}[srd]
        if zedge and g in (0, 36):
            e(f"s_cmp_eq_u32 s41, {0 if g == 0 else 7}")
            e(f"s_cselect_b32 {nrec}, 0, {HEADB}")
        for mm in cols:
            if mm != cols[0]:
                e("s_add_u32 m0, m0, 896")
            e.cap(kcap if tag == "K" else vcap)
            e(f"buffer_load_dwordx4 {V(va)}, {srd}, s44 offen offset:{128*mm} {fl} lds", tag=tag)
        if zedge and g in (0, 36):
            e(f"s_mov_b32 {nrec}, {HEADB}")

    def load_v(n=1):
        for _ in range(n):
            k = vnext[0]
            if k >= 15:
                return
            if k < 10:
                load_group(([8, 12, 24, 28, 0, 32, 4, 36, 16, 20] if khalf else groups)[k], vVD, SV, vf, "V01", (0, 1))
            else:
                for g in groups[2*(k-10):2*(k-10)+2]:
                    load_group(g, vVD, SV, vf, "V2", (2,))
            vnext[0] += 1

    def consts_early():
        j, g, t0, t1 = vJ, vT, vT + 1, vT + 2
        e(f"v_and_b32 {V(j)}, 15, {V(vL)}")
        e(f"v_lshrrev_b32 {V(g)}, 4, {V(vL)}")
        e(f"v_and_b32 {V(t0)}, 7, {V(j)}")
        e(f"v_mul_u32_u24 {V(t0)}, 384, {V(t0)}")
        e(f"v_lshl_add_u32 {V(t0)}, {V(g)}, 4, {V(t0)}")
        e(f"v_and_b32 {V(vQB)}, 8, {V(j)}")
        e(f"v_lshl_add_u32 {V(vQA)}, {V(vQB)}, 3, {V(t0)}")
        e(f"v_xor_b32 {V(vQB)}, 64, {V(vQA)}")
        e(f"v_add_u32 {V(vQB)}, 3072, {V(vQB)}")
        e(f"v_lshrrev_b32 {V(t0)}, 3, {V(vL)}")
        e(f"v_and_b32 {V(t0)}, 6, {V(t0)}")
        e(f"v_lshlrev_b32 {V(t0)}, 4, {V(t0)}")
        e(f"v_xor_b32 {V(vVD)}, {V(t0)}, {V(vST)}")
        e(f"v_lshrrev_b32 {V(t0)}, 3, {V(j)}")
        e(f"v_mul_u32_u24 {V(t1)}, 3072, {V(t0)}")
        e(f"v_and_b32 {V(t0)}, 7, {V(j)}")
        e(f"v_lshl_add_u32 {V(t1)}, {V(t0)}, 7, {V(t1)}")
        e(f"v_xor_b32 {V(t0)}, {V(t0)}, {V(g)}")
        e(f"v_lshl_add_u32 {V(t1)}, {V(t0)}, 4, {V(t1)}")
        e(f"s_mul_i32 s50, s3, {4*TILEB}")
        e(f"v_add_u32 {V(vCR)}, s50, {V(t1)}")
        e(f"v_xor_b32 {V(vCR+1)}, 64, {V(vCR)}")
        e(f"v_and_b32 {V(t0)}, 1, {V(j)}")
        e(f"v_mul_u32_u24 {V(t0)}, 384, {V(t0)}")
        e(f"v_lshl_add_u32 {V(t0)}, {V(g)}, 4, {V(t0)}")
        e(f"v_add_u32 {V(vGR)}, s43, {V(t0)}")

    def consts_rest():
        j, g, t0, t1, t2 = vJ, vT, vT + 1, vT + 2, vT + 3
        e(f"v_lshrrev_b32 {V(g)}, 4, {V(vL)}")
        e(f"v_lshlrev_b32 {V(vG4)}, 2, {V(g)}")
        e(f"v_mov_b32 {V(vBig)}, {BIG:#x}")
        e(f"v_lshlrev_b32 {V(t1)}, 7, {V(j)}")
        e(f"v_and_b32 {V(t0)}, 1, {V(g)}")
        e(f"v_lshl_add_u32 {V(t1)}, {V(t0)}, 3, {V(t1)}")
        e(f"v_add_u32 {V(t1)}, s43, {V(t1)}")
        e(f"v_lshrrev_b32 {V(t2)}, 1, {V(g)}")
        e(f"v_and_b32 {V(t0)}, 7, {V(j)}")
        e(f"v_xor_b32 {V(t2)}, {V(t2)}, {V(t0)}")
        for b in range(4):
            e(f"v_xor_b32 {V(t0)}, {2*b}, {V(t2)}")
            e(f"v_lshl_add_u32 {V(vOW+b)}, {V(t0)}, 4, {V(t1)}")
        e(f"v_lshrrev_b32 {V(t0)}, 3, {V(vL)}")
        e(f"v_and_b32 {V(t1)}, 7, {V(vL)}")
        e(f"v_xor_b32 {V(t2)}, {V(t0)}, {V(t1)}")
        e(f"v_lshlrev_b32 {V(t2)}, 4, {V(t2)}")
        e(f"v_lshl_add_u32 {V(t2)}, {V(t0)}, 7, {V(t2)}")
        e(f"v_add_u32 {V(vOR)}, s43, {V(t2)}")
        if not r128:
            e(f"v_mul_u32_u24 {V(t0)}, 384, {V(t0)}")
            e(f"v_lshl_add_u32 {V(vST)}, {V(t1)}, 4, {V(t0)}")
        e(f"v_and_b32 {V(t2)}, 3, {V(vL)}")
        if r128:
            e(f"v_bfe_u32 {V(t0)}, {V(vL)}, 2, 3")
            e(f"v_lshlrev_b32 {V(t1)}, 7, {V(t0)}")
            e(f"v_lshrrev_b32 {V(t0)}, 5, {V(vL)}")
            e(f"v_mul_u32_u24 {V(t0)}, 3072, {V(t0)}")
            e(f"v_add_u32 {V(t1)}, {V(t1)}, {V(t0)}")
        else:
            e(f"v_lshrrev_b32 {V(t0)}, 2, {V(vL)}")
            e(f"v_mul_u32_u24 {V(t1)}, 384, {V(t0)}")
        e(f"v_lshl_add_u32 {V(t1)}, {V(t2)}, 3, {V(t1)}")
        e(f"v_bfe_u32 {V(vT+4)}, {V(vL)}, 3, 2")
        e(f"s_mul_i32 s44, s3, {4*TILEB}")
        for b in range(4):
            e(f"v_xor_b32 {V(t0)}, {b}, {V(vT+4)}")
            e(f"v_lshl_add_u32 {V(t0)}, {V(t0)}, 5, {V(t1)}")
            e(f"v_add_u32 {V(vVR+b)}, s44, {V(t0)}")
        for i in range(3):
            e("s_mul_i32 s44, s3, 3")
            e(f"s_add_u32 s44, s44, {i}")
            e("s_and_b32 s50, s44, 3")
            e("s_lshr_b32 s44, s44, 2")
            e(f"s_lshl_b32 s44, s44, {10 if r128 else 7}")
            e(f"s_add_u32 s44, s44, {2*TILEB}")
            e(f"v_xor_b32 {V(t0)}, s50, {V(vT+4)}")
            e(f"v_lshl_add_u32 {V(t0)}, {V(t0)}, 5, {V(t1)}")
            e(f"v_add_u32 {V(vGV+i)}, s44, {V(t0)}")
        e(f"v_bfe_u32 {V(t0)}, {V(vL)}, 2, 1")
        e(f"v_mul_u32_u24 {V(t0)}, 384, {V(t0)}")
        e(f"v_lshl_add_u32 {V(t0)}, {V(t2)}, 3, {V(t0)}")
        e(f"v_add_u32 {V(vVG)}, s43, {V(t0)}")
        e(f"v_add_u32 {V(vPW)}, s43, {V(vLin)}")
        e(f"v_add_u32 {V(vPR)}, {VIMG + 6144}, {V(vLin)}")
        e(f"v_lshlrev_b32 {V(t0)}, 4, {V(j)}")
        e(f"v_add_u32 {V(vMX)}, {XCH}, {V(t0)}")
        e("s_mul_i32 s44, s41, 1536")
        e("s_mul_i32 s50, s3, 192")
        e("s_add_u32 s44, s44, s50")
        e(f"v_cmp_gt_u32 vcc, 2, {V(j)}")
        e(f"v_mul_u32_u24 {V(t0)}, 768, {V(j)}")
        e(f"v_lshl_add_u32 {V(t0)}, {V(g)}, 4, {V(t0)}")
        e(f"v_add_u32 {V(t0)}, s44, {V(t0)}")
        e(f"v_cndmask_b32 {V(vWS)}, {V(vBig)}, {V(t0)}, vcc")
        e("s_cmp_eq_u32 s3, 0")
        e("s_cselect_b32 s50, 2, 0")
        e(f"v_cmp_gt_u32 vcc, s50, {V(vL)}")
        e("s_lshl_b32 s44, s41, 3")
        e("s_add_u32 s44, s44, 12288")
        e(f"v_lshlrev_b32 {V(t0)}, 6, {V(j)}")
        e(f"v_add_u32 {V(t0)}, s44, {V(t0)}")
        e(f"v_cndmask_b32 {V(vML)}, {V(vBig)}, {V(t0)}, vcc")
        e("s_cmp_eq_u32 s60, 0")
        e("s_cselect_b32 s44, 16, 0")
        e(f"v_cmp_gt_u32 vcc, s44, {V(vL)}")
        e(f"s_mov_b32 s49, {f2u(SCALE):#x}")
        e("s_add_u32 s16, s16, s45")
        e("s_addc_u32 s17, s17, 0")
        e(f"v_cndmask_b32 {V(vSTM)}, {V(vST)}, {V(vBig)}, vcc")
        e(f"v_cmp_gt_u32 vcc, 16, {V(vL)}")
        e(f"s_mov_b32 s18, {HEADB}")
        e("s_mov_b32 s19, 0x20000")
        e(f"v_cndmask_b32 {B(20)}, {V(vBig)}, 0, vcc")
        e(f"v_cndmask_b32 {V(vLow)}, 0, {V(vBig)}, vcc")
        e(f"v_mov_b32 {B(22)}, {V(vBig)}")
        e(f"v_mov_b32 {B(21)}, {B(20)}")
        e(f"v_mov_b32 {B(23)}, {V(vBig)}")
        for r in range(4):
            e(f"v_add_u32 {V(vT+4+r)}, {r}, {V(vG4)}")
        for r in range(4):
            e(f"v_cmp_lt_u32 s[{52+2*r}:{53+2*r}], {V(vT+4+r)}, {V(j)}")
        for r in range(4):
            e(f"v_cndmask_b32 {B(r)}, 0, {V(vBig)}, s[{52+2*r}:{53+2*r}]")
        for r in range(4):
            e(f"v_cmp_gt_u32 s[{52+2*r}:{53+2*r}], {V(vT+4+r)}, {V(j)}")
        for r in range(4):
            e(f"v_cndmask_b32 {B(16+r)}, 0, {V(vBig)}, s[{52+2*r}:{53+2*r}]")
        for k in range(4, 16):
            e(f"v_mov_b32 {B(k)}, 0")
        e("s_lshl_b32 s44, s40, 14")
        e("s_add_u32 s20, s20, s44")
        e("s_addc_u32 s21, s21, 0")
        e("s_mov_b32 s22, 16384")
        e("s_mov_b32 s23, 0x20000")
        e("s_mov_b32 s26, 256")
        e("s_mov_b32 s27, 0x20000")

    def edge_bias(t):
        big, low = V(vBig), V(vLow)
        left = {0: [(TRI[r], B(r)) for r in range(4)] + [(B(k), big) for k in range(8)] + [(B(8), low), (B(9), low)],
                1: [(B(4), low), (B(5), low), (B(6), "0"), (B(7), "0"), (B(8), "0"), (B(9), "0")],
                2: [(B(2), TRI[2]), (B(3), TRI[3]), (B(4), "0"), (B(5), "0")],
                3: [(B(0), TRI[0]), (B(1), TRI[1])]}[t]
        e("s_cmp_lg_u32 s60, 0")
        e(f"s_cbranch_scc1 L_noleft{t}")
        for d, s_ in left:
            e(f"v_mov_b32 {d}, {s_}")
        if t == 2:
            e(f"v_min_f32 {B(0)}, {TRI[0]}, {low}")
            e(f"v_min_f32 {B(1)}, {TRI[1]}, {low}")
        e.label(f"L_noleft{t}")
        if t >= 2:
            e("s_cmp_lg_u32 s60, 1984")
            e(f"s_cbranch_scc1 L_noright{t}")
            for r in range(4):
                e(f"v_mov_b32 {B((16 if t == 2 else 12) + r)}, {big}")
            e.label(f"L_noright{t}")

    def capture(fn):
        nonlocal e
        real = e
        e = Asm()
        fn()
        lines = [i.text for i in e.lines]
        e = real
        return lines

    def xlane_ops(x, op):
        ops = []
        for sw in ("v_permlane32_swap_b32", "v_permlane16_swap_b32"):
            ops += [T(f"v_mov_b32 {tmp}, {x}"), T(f"{sw} {x}, {tmp}"), T(f"{op} {x}, {x}, {tmp}")]
        return ops

    def weave(mf, mem, valu):
        n = len(mf); dm = dv = 0
        for i, mo in enumerate(mf):
            mo()
            um = (len(mem) * (i + 1) + n - 1) // n
            uv = (len(valu) * (i + 1) + n - 1) // n
            run(mem[dm:um]); run(valu[dv:uv]); dm, dv = um, uv

    def qfix_ops(t, L):
        Q = Qt[t]
        a, b, x = 8 * L, 8 * L + 4, (24 if L == 0 else 8 * L - 4)
        ops = [T(f"v_mov_b32_dpp {Q(x+k)}, {Q(b+k)} row_ror:8 row_mask:0xf bank_mask:0xf") for k in range(4)]
        ops += [T(f"v_mov_b32_dpp {Q(x+k)}, {Q(a+k)} row_ror:8 row_mask:0xf bank_mask:0x3") for k in range(4)]
        ops += [T(f"v_mov_b32_dpp {Q(a+k)}, {Q(b+k)} quad_perm:[0,1,2,3] row_mask:0xf bank_mask:0xc") for k in range(4)]
        return ops

    def scores(t, mem=()):
        S, Q = Ss[t & 1], Qt[t]
        qop = [Q(0, 4), Q(24, 4), Q(8, 4), Q(4, 4), Q(16, 4), Q(12, 4)]
        mem = list(mem)
        run(qfix_ops(t, 0))
        for L in range(3):
            mf = []
            for s in (2 * L, 2 * L + 1):
                for u in range(6):
                    a_op = Kt[t + u](4*s, 4) if u < 5 else KG(4*s, 4)
                    c = B(4*u, 4) if s == 0 else S(4*u, 4)
                    mf.append(T(f"v_mfma_f32_16x16x32_bf16 {S(4*u,4)}, {a_op}, {qop[s]}, {c}"))
            part = mem[(len(mem) * L) // 3:(len(mem) * (L + 1)) // 3]
            weave(mf, part, qfix_ops(t, L + 1) if L < 2 else [])

    def softmax(par):
        S, P = Ss[par], Ps[par]
        cut = 8 if par else 2
        pd = lambda k: P(cut) if k == 10 else (P(k) if k < cut else P(k + 2))
        e(f"v_mov_b32 {P(cut+1)}, 0")
        e(f"v_max3_f32 {m}, {S(0)}, {S(1)}, {S(2)}")
        e(f"v_max3_f32 {l}, {S(3)}, {S(4)}, {S(5)}")
        for k in range(6, 22, 4):
            e(f"v_max3_f32 {m}, {m}, {S(k)}, {S(k+1)}")
            e(f"v_max3_f32 {l}, {l}, {S(k+2)}, {S(k+3)}")
        e(f"v_max_f32 {m}, {m}, {l}")
        run(xlane_ops(m, "v_max_f32"))
        e(f"v_mul_f32 {m}, s49, {m}")
        for k in range(22):
            e(f"v_fma_f32 {S(k)}, {S(k)}, s49, -{m}")
        for k in range(22):
            e(f"v_exp_f32 {S(k)}, {S(k)}")
            if k == 3:
                e(f"v_add_f32 {l}, {S(0)}, {S(1)}")
            elif k == 5:
                e(f"v_add_f32 {l2}, {S(2)}, {S(3)}")
            elif k > 5:
                d = l if k % 2 == 0 else l2
                e(f"v_add_f32 {d}, {d}, {S(k-2)}")
        e(f"v_add_f32 {l}, {l}, {S(20)}")
        e(f"v_add_f32 {l2}, {l2}, {S(21)}")
        e(f"v_add_f32 {l}, {l}, {l2}")
        run(xlane_ops(l, "v_add_f32"))
        e(f"v_rcp_f32 {l}, {l}")
        for k in range(11):
            e(f"v_mul_f32 {S(2*k)}, {S(2*k)}, {l}")
            e(f"v_mul_f32 {S(2*k+1)}, {S(2*k+1)}, {l}")
            if k > 0:
                e(f"v_cvt_pk_bf16_f32 {pd(k-1)}, {S(2*k-2)}, {S(2*k-1)}")
        e(f"v_cvt_pk_bf16_f32 {pd(10)}, {S(20)}, {S(21)}")

    ASTEP = 1024 if r128 else 128

    def job_reads(j):
        F = Fb[j % D]
        ops = []
        tag = f"j{j}"
        if j < 8:
            base = (j % 4) * 2 * TILEB
            for i in range(3):
                ops.append(T(f"ds_read_b64_tr_b16 {F(4*i,2)}, {V(vGV+i if j < 4 else vVD+i)} offset:{base}", tag))
                ops.append(T(f"ds_read_b64_tr_b16 {F(4*i+2,2)}, {V(vGV+i if j < 4 else vVD+i)} offset:{base+TILEB}", tag))
        else:
            Tn = j - 8
            a, b = Tn >> 2, Tn & 3
            for u, slot in ((0, 0), (-1, 1), (1, 3), (2, 4), (3, 5), (4, 6), (5, 2)):
                if u >= 0:
                    ops.append(T(f"ds_read_b64_tr_b16 {F(2*slot,2)}, {V(vVR+b)} offset:{ASTEP*a + TILEB*u}", tag))
                else:
                    ops.append(T(f"ds_read_b64_tr_b16 {F(2*slot,2)}, {V(vVG)} offset:{8192+32*Tn}", tag))
        return ops

    def acc(Tn, odd):
        return R("v", O.b + 8 * (Tn % 4) + 4 * odd)

    def job_mfmas(j):
        F = Fb[j % D]
        if j < 8:
            return [T(f"v_mfma_f32_16x16x32_bf16 {OG(4*i,4)}, {F(4*i,4)}, {PG(4*j,4)}, " + ("0" if j == 0 else OG(4*i, 4)))
                    for i in range(3)]
        mf = []
        for ks in range(3):
            for odd in range(2):
                off = (0, 6, 10)[ks] if not odd else (6, 10, 2)[ks]
                d = acc(j - 8, odd)
                mf.append(T(f"v_mfma_f32_16x16x32_bf16 {d(0,4)}, {F(off,4)}, {Ps[odd](4*ks,4)}, " + ("0" if ks == 0 else d(0, 4))))
        return mf

    def cvt_ops(Tn):
        ops = []
        for odd in range(2):
            d = acc(Tn, odd)
            ops += [T(f"v_cvt_pk_bf16_f32 {d(0)}, {d(0)}, {d(1)}"), T(f"v_cvt_pk_bf16_f32 {d(1)}, {d(2)}, {d(3)}")]
        return ops

    def stage_ops(Tn):
        return [T(f"ds_write_b64 {V(vOW+(Tn&3))}, {acc(Tn, odd)(0,2)} offset:{2048*odd}", "ow") for odd in range(2)]

    quads = lambda r, n: [R(r.f, r.b + 4 * i) for i in range(n)]
    HB = [R("v", 252)] + quads(Kt[1], 6) + quads(R("a", 244), 3) + quads(R("a", 16), 2)

    def readback_ops(c):
        return [T(f"ds_read_b128 {HB[4*c+i](0,4)}, {V(vOR)} offset:{1024*i}", f"or{c}_{i}") for i in range(4)]

    def store_ops(c, first):
        ops = []
        for i in range(4):
            va = vSTM if (first and i == 0) else vST
            txt = f"buffer_store_dwordx4 {HB[4*c+i](0,4)}, {V(va)}, {SO}, s50 offen offset:{128*c} {sf0 if first else sf}"
            ops.append(lambda i=i, txt=txt: (e(f"s_add_i32 s50, s57, {3072*i}"), e.wait(lg=f"or{c}_{i}"), e(txt, tag="O")))
        return ops

    def do_job(j, last, mem, valu):
        rd = job_reads(j - 1 + D) if (j >= 1 and j - 1 + D <= last) else []
        mm = []
        mem = list(mem)
        while rd or mem:
            if rd:
                mm.append(rd.pop(0))
            if mem:
                mm.append(mem.pop(0))
        e.wait(lg=f"j{j}")
        weave(job_mfmas(j), mm, list(valu))

    ncall = [0]
    CB = R("v", 192); W = R("v", 72)

    def pv_pair():
        def cond_store(c):
            sl, sv = list(e.lg), list(e.vm)
            lab = f"L_hold{c}" if subs else f"L_hold{c}_{ncall[0]}"
            e("s_cmp_eq_u32 s56, 0")
            e(f"s_cbranch_scc1 {lab}")
            run(store_ops(c, False))
            e.label(lab)
            e.lg[:] = sl
            if ncall[0] == 0:
                e.vm[:] = sv
        for Tn in range(12):
            if Tn == sync:
                sv = list(e.vm)
                lab = "L_nosync" if subs else f"L_nosync{ncall[0]}"
                e("s_cmp_lg_u32 s56, 0")
                e(f"s_cbranch_scc1 {lab}")
                if q2in:
                    load_q(2)
                if q3pos == 0:
                    load_q(3)
                q3o = load_q_ops(3) if q3pos == 1 else []
                run(q3o[:q3split])
                e(f"s_waitcnt vmcnt({12 if q3pos == 0 else 6 + q3split})")
                e("s_barrier")
                run(q3o[q3split:])
                e.label(lab)
                if ncall[0] == 0:
                    assert (sv[-1] == "V2") if q2in else (sv[-6:] == ["Q2"] * 6 and sv[-7] == "V2")
                    e.vm[:] = ["Q2"] * 6 + (["Q3"] * 6 if q3pos < 2 else [])
                else:
                    e.vm[:] = sv
            if Tn == chk:
                check_arrival(e, CB, W, SW, vL, vT, sum(pace[3:]))
            mem = stage_ops(Tn - 3) if Tn >= 3 else []
            if Tn in (6, 10):
                mem = mem + readback_ops((Tn - 6) // 4)
            do_job(8 + Tn, 19, mem, cvt_ops(Tn - 2) if Tn >= 2 else [])
            if Tn in (7, 11):
                cond_store((Tn - 7) // 4)
        run(stage_ops(9))
        run(cvt_ops(10)); run(cvt_ops(11))
        run(stage_ops(10)); run(stage_ops(11))
        run(readback_ops(2))
        cond_store(2)
        ncall[0] += 1

    def k_stream():
        if pfpos == 0:
            prefetch_code()
        cst = capture(consts_early) + [t.replace("s44", "s48") for t in capture(consts_rest)]
        cuts_c = [0, 0, 0] + [(len(cst) * k) // 8 for k in range(9)]
        for k, g in enumerate(groups):
            load_group(g, vKA, SK, lf, "K")
            if pfpos == k + 1:
                prefetch_code()
            if k == 3:
                load_g()
            lo, hi = cuts_c[k], cuts_c[k + 1]
            while hi < len(cst) and hi > lo and cst[hi - 1].startswith(("s_cmp", "s_add_u32 s16", "s_add_u32 s20")):
                hi += 1
                cuts_c[k + 1] = hi
            for t in cst[lo:hi]:
                e(t)
        load_q(0, kcap)
        for t in cst[cuts_c[10]:]:
            e(t)
        if not q1late:
            load_q(1, kcap)

    if kcapE is None:
        k_stream()
    else:
        e("s_getreg_b32 s50, hwreg(HW_REG_XCC_ID, 0, 1)")
        e("s_cmp_eq_u32 s50, 0")
        e("s_cbranch_scc1 L_keven")
        sv = list(e.vm)
        k_stream()
        so = list(e.vm)
        e("s_branch L_kdone")
        e.label("L_keven")
        e.vm[:] = sv
        kcapO, kcap = kcap, kcapE
        k_stream()
        kcap = kcapO
        e.label("L_kdone")
        e.vm[:] = so if len(so) >= len(e.vm) else e.vm
    edge_bias(0)
    stamp()
    gq = [T(f"ds_read_b128 {QG(4*s,4)}, {V(vGR)} offset:{7168+64*s}", "qg") for s in range(6)]
    gk = [T(f"ds_read_b128 {KG(4*s,4)}, {V(vGR)} offset:{6144+64*s}", "kg") for s in range(6)]
    e.wait(vm="K")
    if gearly:
        run(gq + gk); gq = gk = []
    e("s_barrier")
    if lite == "k":
        seq[0] = 100; stamp()
    krd = lambda us: [T(f"ds_read_b128 {Kt[u](4*s,4)}, {V(vCR+(s&1))} offset:{u*TILEB + 1024*(s>>1)}", "kc") for u in us for s in range(6)]
    if not khalf:
        rds = gq + krd((2, 3, 4, 5, 0, 1, 6, 7)) + gk
        q1 = load_q_ops(1) if q1late else []
        for k, o in enumerate(rds):
            if k % 10 == 0 and q1:
                q1.pop(0)()
            o()
        e.wait(lg="all")
        e("s_barrier")
    else:
        e("s_bitcmp1_b32 s3, 0")
        e("s_cbranch_scc1 L_kodd")
        sl, sv = list(e.lg), list(e.vm)
        for par in (0, 1):
            if par:
                e("s_branch L_kjoin")
                e.label("L_kodd")
                e.lg[:] = sl; e.vm[:] = sv; vnext[0] = 0
            run(krd((4, 5, 6, 7) if par == 0 else (0, 1, 2, 3)))
            e.wait(lg="all")
            e("s_barrier")
            rds = krd((2, 3, 0, 1) if par == 0 else (4, 5, 6, 7))
            for k, o in enumerate(rds):
                if k % 6 == 0 and k // 6 < khalf:
                    load_v(1)
                o()
        e.label("L_kjoin")
        e.wait(lg="all")
        e("s_barrier")
    if lite == "k":
        stamp(); seq[0] = 1
    load_v(nv0)
    stamp()
    load_v(vsched[0])
    e.wait(lg="all")
    for s in range(6):
        for u in range(4):
            c = "0" if s == 0 else SG(4*u, 4)
            e(f"v_mfma_f32_16x16x32_bf16 {SG(4*u,4)}, {Kt[2+u](4*s,4)}, {QG(4*s,4)}, {c}")
    load_v(vsched[1])
    e(f"v_mov_b32 {l2}, 0")
    e(f"v_mov_b32 {V(vT+4)}, {XCH+512}")
    e("s_lshl_b32 s51, s3, 2")
    e(f"v_add_u32 {V(vT+11)}, s51, {V(vMX)}")
    e(f"v_max3_f32 {m}, {SG(0)}, {SG(1)}, {SG(2)}")
    for k in range(3, 15, 2):
        e(f"v_max3_f32 {m}, {m}, {SG(k)}, {SG(k+1)}")
    e(f"v_max_f32 {m}, {m}, {SG(15)}")
    run(xlane_ops(m, "v_max_f32"))
    e(f"ds_write_b32 {V(vT+11)}, {m}")
    e(f"ds_write_b32 {V(vT+4)}, {l2}")
    e.wait(vm="Q0")
    load_v(vsched[2])
    scores(0)
    load_v(vsched[3])
    edge_bias(1)
    call("F_sm0", lambda: softmax(0))
    stamp()
    e.wait(vm="Q1")
    load_v(vsched[4])
    scores(1)
    load_v(vsched[5])
    call("F_sm1", lambda: softmax(1))
    load_v(vsched[6])
    stamp()
    e.wait(lg="all")
    e("s_barrier")
    e(f"ds_read_b128 {V(vT+4,4)}, {V(vMX)}", tag="mx")
    load_v(vsched[7])
    e.wait(lg="all")
    e(f"v_max3_f32 {m}, {V(vT+4)}, {V(vT+5)}, {V(vT+6)}")
    e(f"v_max_f32 {m}, {m}, {V(vT+7)}")
    e(f"v_mul_f32 {V(vT+8)}, s49, {m}")
    for k in range(16):
        e(f"v_fma_f32 {SG(k)}, {SG(k)}, s49, -{V(vT+8)}")
    for k in range(16):
        e(f"v_exp_f32 {SG(k)}, {SG(k)}")
    e(f"v_add_f32 {l}, {SG(0)}, {SG(1)}")
    for k in range(2, 16):
        e(f"v_add_f32 {l}, {l}, {SG(k)}")
    for k in range(8):
        e(f"v_cvt_pk_bf16_f32 {QG(k)}, {SG(2*k)}, {SG(2*k+1)}")
    run(xlane_ops(l, "v_add_f32"))
    e(f"ds_write_b128 {V(vPW)}, {QG(0,4)} offset:6144")
    e(f"ds_write_b128 {V(vPW)}, {QG(4,4)} offset:7168")
    e(f"ds_write_b32 {V(vT+11)}, {l} offset:256")
    vcap = vcap2
    load_v(15)
    if not q2in:
        load_q(2)
    for i in range(3):
        e(f"v_add_u32 {V(vVD+i)}, {8*TILEB}, {V(vGV+i)}")
    edge_bias(2)
    e("s_mov_b32 s56, 0")
    e("s_mov_b32 s61, 0")
    stamp()
    e.wait(vm="V01", lg="all")
    e("s_barrier")
    for ks in range(8):
        e(f"ds_read_b128 {PG(4*ks,4)}, {V(vPR)} offset:{(ks//2)*SCRB + (ks%2)*1024}", tag="pg")
    e(f"ds_read_b128 {V(vT+4,4)}, {V(vMX)} offset:256", tag="lx")
    for j in range(8, 8 + D - 1):
        run(job_reads(j))
    entry_lg = [t for t in e.lg if t in ("j8", "j9", "j10")]
    e.lg[:] = entry_lg
    call("F_pv", pv_pair)
    stamp()
    if probe:
        e("s_getreg_b32 s96, hwreg(HW_REG_IB_STS)")
    for j in range(D):
        run(job_reads(j))
    q3 = load_q_ops(3) if q3pos == 2 else []
    for j in range(8):
        valu = []
        if j == 4:
            valu = [T(f"v_add_f32 {V(vT+9)}, {V(vT+4)}, {V(vT+5)}"), T(f"v_add_f32 {V(vT+9)}, {V(vT+9)}, {V(vT+6)}"),
                    T(f"v_add_f32 {V(vT+9)}, {V(vT+9)}, {V(vT+7)}")]
        do_job(j, 7, q3[j:j+1], valu)
    stamp()
    if probe:
        e("s_getreg_b32 s97, hwreg(HW_REG_IB_STS)")
    e("s_mov_b32 s57, s42")
    held = [o for c in range(3) for o in store_ops(c, True)]
    if imajor:
        held = [held[4 * c + i] for i in range(4) for c in range(3)]
    cuts = [sum(pace[:k]) for k in range(len(pace) + 1)]
    hs = lambda k: held[cuts[k]:cuts[k+1]]
    assert cuts[-1] == 12
    e.wait(vm="Q2")
    parts = [T(f"buffer_store_dwordx2 {V(vT+8,2)}, {V(vML)}, {SW}, 0 offen sc1", "part")]
    parts += [T(f"buffer_store_dwordx4 {OG(4*i,4)}, {V(vWS)}, {SW}, 0 offen offset:{64*i} sc1", "part") for i in range(3)]
    scores(2, parts + hs(0) + hs(1))
    run(hs(2))
    stamp()
    if probe:
        e("s_getreg_b32 s98, hwreg(HW_REG_IB_STS)")
    fstamp()
    edge_bias(3)
    call("F_sm0", lambda: softmax(0))
    stamp()
    fstamp()
    e.wait(vm=["Q3", "part"])
    e(f"v_mov_b32 {V(vT+5)}, 1")
    e(f"v_mov_b32 {V(vT+4)}, {XCH+512}")
    e("s_mov_b64 exec, 1")
    e(f"ds_add_rtn_u32 {V(vPR)}, {V(vT+4)}, {V(vT+5)}", tag="cnt")
    e("s_mov_b64 exec, -1")
    for b in range(4):
        e(f"v_add_u32 {V(vVR+b)}, {2*TILEB}, {V(vVR+b)}")
    e.wait(lg="all")
    e(f"v_readfirstlane_b32 s61, {V(vPR)}")
    e("s_cmp_lg_u32 s61, 3")
    e("s_cbranch_scc1 L_nosig")
    e("s_lshl_b32 s44, s40, 2")
    e(f"v_mov_b32 {V(vT+4)}, s44")
    e(f"v_mov_b32 {V(vPW)}, 1")
    e("s_mov_b64 exec, 1")
    sv = list(e.vm)
    e(f"buffer_atomic_add {V(vPW)}, {V(vT+4)}, {SD}, 0 offen sc0", tag="atom")
    e.vm[:] = sv + ["sigmark"]
    e("s_mov_b64 exec, -1")
    e.label("L_nosig")
    run(hs(3))
    pre = [o for j in range(8, 8 + D - 1) for o in job_reads(j)]
    mix = list(pre)
    for k, o in enumerate(hs(4)):
        mix.insert((len(pre) * (2 * k + 1)) // (2 * len(hs(4))) + k, o)
    scores(3, mix)
    run(hs(5))
    stamp()
    fstamp()
    call("F_sm1", lambda: softmax(1))
    run(hs(6))
    if wb:
        if wb == "w0":
            e("s_cmp_lg_u32 s3, 0")
            e("s_cbranch_scc1 L_nowb")
        e("buffer_wbl2 sc1")
        if wb == "w0":
            e.label("L_nowb")
    stamp()
    fstamp()
    if chk < 0:
        check_arrival(e, CB, W, SW, vL, vT, len(e.vm) - 1 - e.vm.index("sigmark"))
    e("s_mov_b32 s56, 1")
    e(f"s_add_i32 s57, s42, {2*TILEB}")
    assert e.lg == entry_lg, (e.lg, entry_lg)
    call("F_pv", pv_pair)
    stamp()
    fstamp()
    fstamp(True)
    e("s_cmp_lg_u32 s61, 7")
    e("s_cbranch_scc1 L_fin")
    e("s_waitcnt vmcnt(12)")
    e(f"v_max3_f32 {m}, {W(0)}, {W(2)}, {W(4)}")
    e(f"v_max3_f32 {m}, {m}, {W(6)}, {W(8)}")
    e(f"v_max3_f32 {m}, {m}, {W(10)}, {W(12)}")
    e(f"v_max_f32 {m}, {m}, {W(14)}")
    for s in range(8):
        e(f"v_sub_f32 {W(2*s)}, {W(2*s)}, {m}")
    for s in range(8):
        e(f"v_exp_f32 {W(2*s)}, {W(2*s)}")
    e(f"v_mul_f32 {l}, {W(0)}, {W(1)}")
    for s in range(1, 8):
        e(f"v_fmac_f32 {l}, {W(2*s)}, {W(2*s+1)}")
    e(f"v_rcp_f32 {l}, {l}")
    X = R("v", 120)
    for s in range(8):
        for k in range(6):
            if s == 0:
                e(f"v_mul_f32 {X(k)}, {W(0)}, {CB(k)}")
            else:
                e(f"v_fmac_f32 {X(k)}, {W(2*s)}, {CB(6*s+k)}")
    for k in range(6):
        e(f"v_mul_f32 {X(k)}, {X(k)}, {l}")
    for k in range(3):
        e(f"v_cvt_pk_bf16_f32 {X(k)}, {X(2*k)}, {X(2*k+1)}")
    e(f"v_mul_u32_u24 {tmp}, 12, {V(vL)}")
    e(f"buffer_store_dwordx3 {X(0,3)}, {tmp}, {SO}, 0 offen {sf}")
    e.label("L_fin")
    if stamps:
        e("s_waitcnt vmcnt(0)")
        stamp()
        e("s_load_dwordx2 s[20:21], s[0:1], 56")
        e("s_waitcnt lgkmcnt(0)")
        e("s_mov_b32 s22, 0x1000000")
        e("s_lshl_b32 s44, s2, 2")
        e("s_add_u32 s44, s44, s3")
        e("s_lshl_b32 s44, s44, 6")
        e("s_add_u32 s44, s44, 0x100000")
        e(f"v_mov_b32 {V(vT+1)}, 0")
        if probe:
            for k, reg in enumerate((96, 97, 98)):
                e(f"v_mov_b32 {V(vT)}, s{reg}")
                e(f"buffer_store_dword {V(vT)}, {V(vT+1)}, {SW}, s44 offen offset:{48+4*k}")
                e("s_nop 1")
        e(f"v_mov_b32 {V(vT)}, s61")
        e(f"buffer_store_dword {V(vT)}, {V(vT+1)}, {SW}, s44 offen offset:60")
        e("s_nop 1")
        for k in range(nst[0]):
            e(f"v_mov_b32 {V(vT)}, s{64+2*k}")
            e(f"buffer_store_dword {V(vT)}, {V(vT+1)}, {SW}, s44 offen offset:{4*k}")
            e("s_nop 1")
    e.label("L_end")
    e("s_endpgm")
    text = e.finish() + "L_codeend:\n"
    if strip:
        drop = ("v_mfma", "ds_read_b64_tr", "ds_write_b64", "v_exp", "v_fma_f32", "v_max3", "v_cvt", "v_mul_f32", "v_add_f32",
                "v_mov_b32_dpp", "v_permlane", "v_max_f32", "v_rcp") + (("ds_read_b128",) if strip == 2 else ())
        text = "\n".join(l for l in text.split("\n") if not l.strip().startswith(drop))
    full = HEADER.format(lds=LDS_TOTAL, kn=KN) + text + FOOTER.format(kn=KN)
    if pf:
        full = full.replace("CODE_LAST", str(code_size(full.replace("CODE_LAST", "0x1234"), KN) - 128))
    return full


def check_arrival(e, CB, W, SW, vL, vT, cnt):
    e("s_cmp_lg_u32 s61, 3")
    e("s_cbranch_scc1 L_notlast")
    e(f"s_waitcnt vmcnt({cnt})")
    e("v_readfirstlane_b32 s61, v28")
    e("s_cmp_lg_u32 s61, 7")
    e("s_cbranch_scc1 L_notlast")
    sv = list(e.vm)
    e(f"v_lshrrev_b32 {V(vT+4)}, 5, {V(vL)}")
    e(f"v_and_b32 {V(vT+5)}, 31, {V(vL)}")
    e(f"v_mul_u32_u24 {V(vT+5)}, 24, {V(vT+5)}")
    e(f"v_mul_u32_u24 {V(vT+6)}, 768, {V(vT+4)}")
    e(f"v_add_u32 {V(vT+5)}, {V(vT+5)}, {V(vT+6)}")
    e(f"v_lshlrev_b32 {V(vT+4)}, 6, {V(vT+4)}")
    e("s_mov_b32 s50, 12288")
    for k in range(4):
        e(f"buffer_load_dwordx4 {W(4*k,4)}, {V(vT+4)}, {SW}, s50 offen offset:{16*k} sc1")
    for s in range(8):
        e(f"s_mov_b32 s50, {s*1536}")
        e(f"buffer_load_dwordx4 {CB(6*s,4)}, {V(vT+5)}, {SW}, s50 offen sc1")
        e(f"buffer_load_dwordx2 {CB(6*s+4,2)}, {V(vT+5)}, {SW}, s50 offen offset:16 sc1")
    e.vm[:] = sv
    e.label("L_notlast")


if __name__ == "__main__":
    import ast
    out = sys.argv[1]
    kw = {}
    for a in sys.argv[2:]:
        k, v = a.split("=", 1)
        try:
            kw[k] = ast.literal_eval(v)
        except Exception:
            kw[k] = v
    open(out, "w").write(gen(**kw))
```

```python
import sys, struct
from asmdsl import Asm, code_size

KN = "standalone__global_local_windowed_global_tokens__prompt_kernel"
HEADB = 786432
TILEB = 6144
VIMG = 320 * 384
SCRB = 9216
XCH = VIMG + 4 * SCRB
LDS_TOTAL = XCH + 1024
SCALE = 192 ** -0.5 * 1.4426950408889634
BIG = 0xF1000000


def f2u(x):
    return struct.unpack("<I", struct.pack("<f", x))[0]


HEADER = """; Windowed (|i-j|<=32) + 2 global tokens attention, B=1 H=32 S=2048 D=192, bf16.
; @launch grid=(256,1,1) block=(256,1,1) lds={lds}
.amdgcn_target "amdgcn-amd-amdhsa--gfx950"
.text
.globl {kn}
.p2align 8
.type {kn},@function
{kn}:
"""
FOOTER = """
.section .rodata,"a"
.p2align 6
.amdhsa_kernel {kn}
  .amdhsa_next_free_vgpr 512
  .amdhsa_next_free_sgpr 100
  .amdhsa_accum_offset 256
  .amdhsa_group_segment_fixed_size 0
  .amdhsa_kernarg_size 64
  .amdhsa_user_sgpr_count 2
  .amdhsa_user_sgpr_kernarg_segment_ptr 1
  .amdhsa_system_sgpr_workgroup_id_x 1
  .amdhsa_float_denorm_mode_32 3
.end_amdhsa_kernel
"""


def V(i, n=1):
    return f"v{i}" if n == 1 else f"v[{i}:{i+n-1}]"


def A(i, n=1):
    return f"a{i}" if n == 1 else f"a[{i}:{i+n-1}]"


class R:
    def __init__(self, f, b):
        self.f, self.b = f, b

    def __call__(self, off=0, n=1):
        i = self.b + off
        return f"{self.f}{i}" if n == 1 else f"{self.f}[{i}:{i+n-1}]"


def gen(lf="nt", sf="sc1", stamps=False, gf="", pf=True, qf=None, vf=None, pfall=False, r128=True, nv0=4, chk=3, vcap2=None, imajor=True, strip=None, nohalo=False, sf0=None, wb=None, vsched=(1, 1, 1, 1, 1, 1, 1, 1), subs=True, fine=False, pace=(0, 0, 0, 0, 4, 4, 4), sync=5, q3pos=1, q2in=True, kcap=9, vcap=None, q1late=False, probe=False, gearly=True, khalf=False, lite=(2, 6, 9, 12, 13), q3split=0, pf1=True, pfpos=1, zedge=True, kcapE=None, nostore=False, qlin=False, gorder=None, shf=None, hf=None):
    e = Asm()
    qf = lf if qf is None else qf
    vf = lf if vf is None else vf
    sf0 = sf if sf0 is None else sf0
    SQ, SK, SV, SO, SW, SD = "s[4:7]", "s[8:11]", "s[12:15]", "s[16:19]", "s[20:23]", "s[24:27]"
    vL, vLin, vKA, vLow = 0, 1, 2, 3
    vCW, vCR, vOW, vOR, vQA, vQB, vVR, vVG = 4, 7, 9, 13, 14, 15, 16, 20
    vVD, vGR, vGV, vPW, vPR, vMX, vWS, vML = 21, 24, 25, 28, 29, 30, 31, 32
    vJ, vG4, vBig = 33, 34, 35
    vT = 36
    vST, vSTM = 248, 249
    TRI = [V(4), V(5), V(6), V(190)]
    B = R("v", 48)
    Ss = [R("v", 72), R("v", 96)]
    Ps = [R("v", 120), R("v", 132)]
    O = R("v", 144)
    Kt = [R("a", 24 * u) for u in range(8)]
    KG = R("a", 192)
    Qt = [R("v", 192), R("v", 220), R("v", 192), R("v", 220)]
    Fb = [R("v", 176), R("a", 216), R("a", 230), R("a", 0)]
    D = len(Fb)
    QG = R("v", 144); SG = R("v", 168)
    PG = R("v", 72); OG = R("v", 104)
    m, tmp, l, l2 = V(vT), V(vT + 1), V(vT + 2), V(vT + 3)
    nst = [0]

    def fstamp(real=False):
        if fine:
            k = nst[0]
            e(f"{'s_memrealtime' if real else 's_memtime'} s[{64+2*k}:{65+2*k}]")
            e("s_waitcnt lgkmcnt(0)")
            nst[0] += 1

    seq = [0]

    def stamp():
        seq[0] += 1
        if stamps == "lite" and seq[0] not in ((1, 101, 102, 2, 6, 13) if lite == "k" else (2, 5, 6, 201, 13) if lite == "r" else lite):
            return
        if stamps and not fine:
            k = nst[0]
            e(f"s_memrealtime s[{64+2*k}:{65+2*k}]")
            e("s_waitcnt lgkmcnt(0)")
            nst[0] += 1

    def T(text, tag=None):
        return lambda: e(text, tag=tag)

    def run(ops):
        for o in ops:
            o()

    def call(name, fn):
        if subs:
            e.call(name, fn)
        else:
            fn()

    e("s_cmp_ge_u32 s2, 256")
    e("s_cbranch_scc1 L_end")
    e("s_load_dwordx2 s[8:9], s[0:1], 8")
    e("s_load_dwordx2 s[4:5], s[0:1], 0")
    e("s_load_dwordx2 s[12:13], s[0:1], 16")
    e("s_load_dwordx2 s[16:17], s[0:1], 40")
    e("s_load_dwordx2 s[24:25], s[0:1], 48")
    e("s_load_dwordx2 s[20:21], s[0:1], 56")
    if stamps:
        e("s_memrealtime s[64:65]")
        nst[0] = 1
    if pf:
        e("s_getpc_b64 s[62:63]")
        e("v_lshlrev_b32 v46, 7, v0")
    e("v_lshrrev_b32 v1, 6, v0")
    e(f"v_and_b32 {V(vL)}, 63, v0")
    e("v_readfirstlane_b32 s3, v1")
    e("s_and_b32 s40, s2, 7")
    e("s_lshr_b32 s41, s2, 3")
    e("s_lshl_b32 s40, s40, 2")
    e("s_lshr_b32 s44, s41, 3")
    e("s_add_u32 s40, s40, s44")
    e("s_and_b32 s41, s41, 7")
    e(f"v_lshlrev_b32 {V(vLin)}, 4, {V(vL)}")
    e(f"s_mul_i32 s45, s40, {HEADB}")
    e("s_lshl_b32 s60, s41, 2")
    e("s_add_u32 s60, s60, s3")
    e(f"s_mul_i32 s42, s60, {4*TILEB}")
    e("s_lshl_b32 s60, s60, 6")
    e(f"s_mul_i32 s43, s3, {SCRB}")
    e(f"s_add_u32 s43, s43, {VIMG}")
    if r128:
        e(f"v_lshrrev_b32 {V(vT)}, 3, {V(vL)}")
        e(f"v_and_b32 {V(vT+1)}, 7, {V(vL)}")
        e(f"v_mul_u32_u24 {V(vT)}, 384, {V(vT)}")
        e(f"v_lshl_add_u32 {V(vST)}, {V(vT+1)}, 4, {V(vT)}")
        e(f"v_lshrrev_b32 {V(vT)}, 3, {V(vL)}")
        e(f"v_lshlrev_b32 {V(vT)}, 4, {V(vT)}")
        e(f"v_xor_b32 {V(vKA)}, {V(vT)}, {V(vST)}")
        e("s_mul_i32 s46, s41, 98304")
        e("s_mul_i32 s47, s3, 3072")
        e(f"s_add_i32 s46, s46, {-32*384}")
        e("s_add_i32 s46, s46, s47")
    e(f"s_mov_b32 s10, {HEADB}")
    e("s_mov_b32 s11, 0x20000")
    e(f"s_mov_b32 s6, {HEADB}")
    e("s_mov_b32 s7, 0x20000")
    e(f"s_mov_b32 s14, {HEADB}")
    e("s_mov_b32 s15, 0x20000")
    e("s_waitcnt lgkmcnt(0)")
    for b in (8, 4, 12):
        e(f"s_add_u32 s{b}, s{b}, s45")
        e(f"s_addc_u32 s{b+1}, s{b+1}, 0")

    def prefetch_code():
        if not pf:
            return
        if pf1:
            e("s_lshr_b32 s50, s2, 3")
            e("s_lshl_b32 s50, s50, 2")
            e("s_add_u32 s50, s50, s3")
            e("s_lshl_b32 s50, s50, 7")
            e("s_min_u32 s50, s50, CODE_LAST")
            e("v_mov_b32 v46, s50")
            sv = list(e.vm)
            e("global_load_dword v47, v46, s[62:63]")
            e.vm[:] = sv
            return
        if not pfall:
            e("s_cmp_ge_u32 s2, 16")
            e("s_cbranch_scc1 L_nopf")
        e("v_min_u32 v46, CODE_LAST, v46")
        sv = list(e.vm)
        e("global_load_dword v47, v46, s[62:63]")
        e.vm[:] = sv
        if not pfall:
            e.label("L_nopf")

    def load_g():
        for off, srd in ((6144, SK), (7168, SQ), (8192, SV)):
            e(f"s_add_u32 m0, s43, {off}")
            e.cap(kcap)
            e(f"buffer_load_dwordx4 {V(vLin)}, {srd}, 0 offen {gf} lds", tag="g")

    def load_q_ops(t):
        e(f"s_add_i32 s44, s42, {t*TILEB}")
        ops = []
        for L in range(3):
            ops.append(T(f"buffer_load_dwordx4 {Qt[t](8*L,4)}, {V(vQA)}, {SQ}, s44 offen offset:{128*L} {qf}", f"Q{t}"))
            ops.append(T(f"buffer_load_dwordx4 {Qt[t](8*L+4,4)}, {V(vQB)}, {SQ}, s44 offen offset:{128*L} {qf}", f"Q{t}"))
        return ops

    def load_q(t, cap=None):
        for o in load_q_ops(t):
            e.cap(cap)
            o()

    groups = list(gorder) if gorder else [0, 32, 4, 36, 8, 12, 16, 20, 24, 28]
    vnext = [0]

    def load_group(g, va, srd, fl, tag, cols=(0, 1, 2)):
        if nohalo and g in (0, 36):
            return
        e(f"s_add_u32 m0, s47, {g*3072 + 896*cols[0]}")
        e(f"s_add_i32 s44, s46, {g*3072}")
        if g < 4:
            e("s_max_i32 s44, s44, 0")
        if g > 32:
            e(f"s_min_i32 s44, s44, {2040*384}")
        if shf is not None and g in (4, 32):
            fl = shf
        if hf is not None and g in (0, 36):
            fl = hf
        nrec = {SK: "s10", SV: "s14"}[srd]
        if zedge and g in (0, 36):
            e(f"s_cmp_eq_u32 s41, {0 if g == 0 else 7}")
            e(f"s_cselect_b32 {nrec}, 0, {HEADB}")
        for mm in cols:
            if mm != cols[0]:
                e("s_add_u32 m0, m0, 896")
            e.cap(kcap if tag == "K" else vcap)
            e(f"buffer_load_dwordx4 {V(va)}, {srd}, s44 offen offset:{128*mm} {fl} lds", tag=tag)
        if zedge and g in (0, 36):
            e(f"s_mov_b32 {nrec}, {HEADB}")

    def load_v(n=1):
        for _ in range(n):
            k = vnext[0]
            if k >= 15:
                return
            if k < 10:
                load_group(([8, 12, 24, 28, 0, 32, 4, 36, 16, 20] if khalf else groups)[k], vVD, SV, vf, "V01", (0, 1))
            else:
                for g in groups[2*(k-10):2*(k-10)+2]:
                    load_group(g, vVD, SV, vf, "V2", (2,))
            vnext[0] += 1

    def consts_early():
        j, g, t0, t1 = vJ, vT, vT + 1, vT + 2
        e(f"v_and_b32 {V(j)}, 15, {V(vL)}")
        e(f"v_lshrrev_b32 {V(g)}, 4, {V(vL)}")
        e(f"v_and_b32 {V(t0)}, 7, {V(j)}")
        e(f"v_mul_u32_u24 {V(t0)}, 384, {V(t0)}")
        e(f"v_lshl_add_u32 {V(t0)}, {V(g)}, 4, {V(t0)}")
        e(f"v_and_b32 {V(vQB)}, 8, {V(j)}")
        e(f"v_lshl_add_u32 {V(vQA)}, {V(vQB)}, 3, {V(t0)}")
        e(f"v_xor_b32 {V(vQB)}, 64, {V(vQA)}")
        e(f"v_add_u32 {V(vQB)}, 3072, {V(vQB)}")
        e(f"v_lshrrev_b32 {V(t0)}, 3, {V(vL)}")
        e(f"v_and_b32 {V(t0)}, 6, {V(t0)}")
        e(f"v_lshlrev_b32 {V(t0)}, 4, {V(t0)}")
        e(f"v_xor_b32 {V(vVD)}, {V(t0)}, {V(vST)}")
        e(f"v_lshrrev_b32 {V(t0)}, 3, {V(j)}")
        e(f"v_mul_u32_u24 {V(t1)}, 3072, {V(t0)}")
        e(f"v_and_b32 {V(t0)}, 7, {V(j)}")
        e(f"v_lshl_add_u32 {V(t1)}, {V(t0)}, 7, {V(t1)}")
        e(f"v_xor_b32 {V(t0)}, {V(t0)}, {V(g)}")
        e(f"v_lshl_add_u32 {V(t1)}, {V(t0)}, 4, {V(t1)}")
        e(f"s_mul_i32 s50, s3, {4*TILEB}")
        e(f"v_add_u32 {V(vCR)}, s50, {V(t1)}")
        e(f"v_xor_b32 {V(vCR+1)}, 64, {V(vCR)}")
        e(f"v_and_b32 {V(t0)}, 1, {V(j)}")
        e(f"v_mul_u32_u24 {V(t0)}, 384, {V(t0)}")
        e(f"v_lshl_add_u32 {V(t0)}, {V(g)}, 4, {V(t0)}")
        e(f"v_add_u32 {V(vGR)}, s43, {V(t0)}")

    def consts_rest():
        j, g, t0, t1, t2 = vJ, vT, vT + 1, vT + 2, vT + 3
        e(f"v_lshrrev_b32 {V(g)}, 4, {V(vL)}")
        e(f"v_lshlrev_b32 {V(vG4)}, 2, {V(g)}")
        e(f"v_mov_b32 {V(vBig)}, {BIG:#x}")
        e(f"v_lshlrev_b32 {V(t1)}, 7, {V(j)}")
        e(f"v_and_b32 {V(t0)}, 1, {V(g)}")
        e(f"v_lshl_add_u32 {V(t1)}, {V(t0)}, 3, {V(t1)}")
        e(f"v_add_u32 {V(t1)}, s43, {V(t1)}")
        e(f"v_lshrrev_b32 {V(t2)}, 1, {V(g)}")
        e(f"v_and_b32 {V(t0)}, 7, {V(j)}")
        e(f"v_xor_b32 {V(t2)}, {V(t2)}, {V(t0)}")
        for b in range(4):
            e(f"v_xor_b32 {V(t0)}, {2*b}, {V(t2)}")
            e(f"v_lshl_add_u32 {V(vOW+b)}, {V(t0)}, 4, {V(t1)}")
        e(f"v_lshrrev_b32 {V(t0)}, 3, {V(vL)}")
        e(f"v_and_b32 {V(t1)}, 7, {V(vL)}")
        e(f"v_xor_b32 {V(t2)}, {V(t0)}, {V(t1)}")
        e(f"v_lshlrev_b32 {V(t2)}, 4, {V(t2)}")
        e(f"v_lshl_add_u32 {V(t2)}, {V(t0)}, 7, {V(t2)}")
        e(f"v_add_u32 {V(vOR)}, s43, {V(t2)}")
        if not r128:
            e(f"v_mul_u32_u24 {V(t0)}, 384, {V(t0)}")
            e(f"v_lshl_add_u32 {V(vST)}, {V(t1)}, 4, {V(t0)}")
        e(f"v_and_b32 {V(t2)}, 3, {V(vL)}")
        if r128:
            e(f"v_bfe_u32 {V(t0)}, {V(vL)}, 2, 3")
            e(f"v_lshlrev_b32 {V(t1)}, 7, {V(t0)}")
            e(f"v_lshrrev_b32 {V(t0)}, 5, {V(vL)}")
            e(f"v_mul_u32_u24 {V(t0)}, 3072, {V(t0)}")
            e(f"v_add_u32 {V(t1)}, {V(t1)}, {V(t0)}")
        else:
            e(f"v_lshrrev_b32 {V(t0)}, 2, {V(vL)}")
            e(f"v_mul_u32_u24 {V(t1)}, 384, {V(t0)}")
        e(f"v_lshl_add_u32 {V(t1)}, {V(t2)}, 3, {V(t1)}")
        e(f"v_bfe_u32 {V(vT+4)}, {V(vL)}, 3, 2")
        e(f"s_mul_i32 s44, s3, {4*TILEB}")
        for b in range(4):
            e(f"v_xor_b32 {V(t0)}, {b}, {V(vT+4)}")
            e(f"v_lshl_add_u32 {V(t0)}, {V(t0)}, 5, {V(t1)}")
            e(f"v_add_u32 {V(vVR+b)}, s44, {V(t0)}")
        for i in range(3):
            e("s_mul_i32 s44, s3, 3")
            e(f"s_add_u32 s44, s44, {i}")
            e("s_and_b32 s50, s44, 3")
            e("s_lshr_b32 s44, s44, 2")
            e(f"s_lshl_b32 s44, s44, {10 if r128 else 7}")
            e(f"s_add_u32 s44, s44, {2*TILEB}")
            e(f"v_xor_b32 {V(t0)}, s50, {V(vT+4)}")
            e(f"v_lshl_add_u32 {V(t0)}, {V(t0)}, 5, {V(t1)}")
            e(f"v_add_u32 {V(vGV+i)}, s44, {V(t0)}")
        e(f"v_bfe_u32 {V(t0)}, {V(vL)}, 2, 1")
        e(f"v_mul_u32_u24 {V(t0)}, 384, {V(t0)}")
        e(f"v_lshl_add_u32 {V(t0)}, {V(t2)}, 3, {V(t0)}")
        e(f"v_add_u32 {V(vVG)}, s43, {V(t0)}")
        e(f"v_add_u32 {V(vPW)}, s43, {V(vLin)}")
        e(f"v_add_u32 {V(vPR)}, {VIMG + 6144}, {V(vLin)}")
        e(f"v_lshlrev_b32 {V(t0)}, 4, {V(j)}")
        e(f"v_add_u32 {V(vMX)}, {XCH}, {V(t0)}")
        e("s_mul_i32 s44, s41, 1536")
        e("s_mul_i32 s50, s3, 192")
        e("s_add_u32 s44, s44, s50")
        e(f"v_cmp_gt_u32 vcc, 2, {V(j)}")
        e(f"v_mul_u32_u24 {V(t0)}, 768, {V(j)}")
        e(f"v_lshl_add_u32 {V(t0)}, {V(g)}, 4, {V(t0)}")
        e(f"v_add_u32 {V(t0)}, s44, {V(t0)}")
        e(f"v_cndmask_b32 {V(vWS)}, {V(vBig)}, {V(t0)}, vcc")
        e("s_cmp_eq_u32 s3, 0")
        e("s_cselect_b32 s50, 2, 0")
        e(f"v_cmp_gt_u32 vcc, s50, {V(vL)}")
        e("s_lshl_b32 s44, s41, 3")
        e("s_add_u32 s44, s44, 12288")
        e(f"v_lshlrev_b32 {V(t0)}, 6, {V(j)}")
        e(f"v_add_u32 {V(t0)}, s44, {V(t0)}")
        e(f"v_cndmask_b32 {V(vML)}, {V(vBig)}, {V(t0)}, vcc")
        e("s_cmp_eq_u32 s60, 0")
        e("s_cselect_b32 s44, 16, 0")
        e(f"v_cmp_gt_u32 vcc, s44, {V(vL)}")
        e(f"s_mov_b32 s49, {f2u(SCALE):#x}")
        e("s_add_u32 s16, s16, s45")
        e("s_addc_u32 s17, s17, 0")
        e(f"v_cndmask_b32 {V(vSTM)}, {V(vST)}, {V(vBig)}, vcc")
        e(f"v_cmp_gt_u32 vcc, 16, {V(vL)}")
        e(f"s_mov_b32 s18, {HEADB}")
        e("s_mov_b32 s19, 0x20000")
        e(f"v_cndmask_b32 {B(20)}, {V(vBig)}, 0, vcc")
        e(f"v_cndmask_b32 {V(vLow)}, 0, {V(vBig)}, vcc")
        e(f"v_mov_b32 {B(22)}, {V(vBig)}")
        e(f"v_mov_b32 {B(21)}, {B(20)}")
        e(f"v_mov_b32 {B(23)}, {V(vBig)}")
        for r in range(4):
            e(f"v_add_u32 {V(vT+4+r)}, {r}, {V(vG4)}")
        for r in range(4):
            e(f"v_cmp_lt_u32 s[{52+2*r}:{53+2*r}], {V(vT+4+r)}, {V(j)}")
        for r in range(4):
            e(f"v_cndmask_b32 {B(r)}, 0, {V(vBig)}, s[{52+2*r}:{53+2*r}]")
        for r in range(4):
            e(f"v_cmp_gt_u32 s[{52+2*r}:{53+2*r}], {V(vT+4+r)}, {V(j)}")
        for r in range(4):
            e(f"v_cndmask_b32 {B(16+r)}, 0, {V(vBig)}, s[{52+2*r}:{53+2*r}]")
        for k in range(4, 16):
            e(f"v_mov_b32 {B(k)}, 0")
        e("s_lshl_b32 s44, s40, 14")
        e("s_add_u32 s20, s20, s44")
        e("s_addc_u32 s21, s21, 0")
        e("s_mov_b32 s22, 16384")
        e("s_mov_b32 s23, 0x20000")
        e("s_mov_b32 s26, 256")
        e("s_mov_b32 s27, 0x20000")

    def edge_bias(t):
        big, low = V(vBig), V(vLow)
        left = {0: [(TRI[r], B(r)) for r in range(4)] + [(B(k), big) for k in range(8)] + [(B(8), low), (B(9), low)],
                1: [(B(4), low), (B(5), low), (B(6), "0"), (B(7), "0"), (B(8), "0"), (B(9), "0")],
                2: [(B(2), TRI[2]), (B(3), TRI[3]), (B(4), "0"), (B(5), "0")],
                3: [(B(0), TRI[0]), (B(1), TRI[1])]}[t]
        e("s_cmp_lg_u32 s60, 0")
        e(f"s_cbranch_scc1 L_noleft{t}")
        for d, s_ in left:
            e(f"v_mov_b32 {d}, {s_}")
        if t == 2:
            e(f"v_min_f32 {B(0)}, {TRI[0]}, {low}")
            e(f"v_min_f32 {B(1)}, {TRI[1]}, {low}")
        e.label(f"L_noleft{t}")
        if t >= 2:
            e("s_cmp_lg_u32 s60, 1984")
            e(f"s_cbranch_scc1 L_noright{t}")
            for r in range(4):
                e(f"v_mov_b32 {B((16 if t == 2 else 12) + r)}, {big}")
            e.label(f"L_noright{t}")

    def capture(fn):
        nonlocal e
        real = e
        e = Asm()
        fn()
        lines = [i.text for i in e.lines]
        e = real
        return lines

    def xlane_ops(x, op):
        ops = []
        for sw in ("v_permlane32_swap_b32", "v_permlane16_swap_b32"):
            ops += [T(f"v_mov_b32 {tmp}, {x}"), T(f"{sw} {x}, {tmp}"), T(f"{op} {x}, {x}, {tmp}")]
        return ops

    def weave(mf, mem, valu):
        n = len(mf); dm = dv = 0
        for i, mo in enumerate(mf):
            mo()
            um = (len(mem) * (i + 1) + n - 1) // n
            uv = (len(valu) * (i + 1) + n - 1) // n
            run(mem[dm:um]); run(valu[dv:uv]); dm, dv = um, uv

    def qfix_ops(t, L):
        Q = Qt[t]
        a, b, x = 8 * L, 8 * L + 4, (24 if L == 0 else 8 * L - 4)
        ops = [T(f"v_mov_b32_dpp {Q(x+k)}, {Q(b+k)} row_ror:8 row_mask:0xf bank_mask:0xf") for k in range(4)]
        ops += [T(f"v_mov_b32_dpp {Q(x+k)}, {Q(a+k)} row_ror:8 row_mask:0xf bank_mask:0x3") for k in range(4)]
        ops += [T(f"v_mov_b32_dpp {Q(a+k)}, {Q(b+k)} quad_perm:[0,1,2,3] row_mask:0xf bank_mask:0xc") for k in range(4)]
        return ops

    def scores(t, mem=()):
        S, Q = Ss[t & 1], Qt[t]
        qop = [Q(0, 4), Q(24, 4), Q(8, 4), Q(4, 4), Q(16, 4), Q(12, 4)]
        mem = list(mem)
        run(qfix_ops(t, 0))
        for L in range(3):
            mf = []
            for s in (2 * L, 2 * L + 1):
                for u in range(6):
                    a_op = Kt[t + u](4*s, 4) if u < 5 else KG(4*s, 4)
                    c = B(4*u, 4) if s == 0 else S(4*u, 4)
                    mf.append(T(f"v_mfma_f32_16x16x32_bf16 {S(4*u,4)}, {a_op}, {qop[s]}, {c}"))
            part = mem[(len(mem) * L) // 3:(len(mem) * (L + 1)) // 3]
            weave(mf, part, qfix_ops(t, L + 1) if L < 2 else [])

    def softmax(par):
        S, P = Ss[par], Ps[par]
        cut = 8 if par else 2
        pd = lambda k: P(cut) if k == 10 else (P(k) if k < cut else P(k + 2))
        e(f"v_mov_b32 {P(cut+1)}, 0")
        e(f"v_max3_f32 {m}, {S(0)}, {S(1)}, {S(2)}")
        e(f"v_max3_f32 {l}, {S(3)}, {S(4)}, {S(5)}")
        for k in range(6, 22, 4):
            e(f"v_max3_f32 {m}, {m}, {S(k)}, {S(k+1)}")
            e(f"v_max3_f32 {l}, {l}, {S(k+2)}, {S(k+3)}")
        e(f"v_max_f32 {m}, {m}, {l}")
        run(xlane_ops(m, "v_max_f32"))
        e(f"v_mul_f32 {m}, s49, {m}")
        for k in range(22):
            e(f"v_fma_f32 {S(k)}, {S(k)}, s49, -{m}")
        for k in range(22):
            e(f"v_exp_f32 {S(k)}, {S(k)}")
            if k == 3:
                e(f"v_add_f32 {l}, {S(0)}, {S(1)}")
            elif k == 5:
                e(f"v_add_f32 {l2}, {S(2)}, {S(3)}")
            elif k > 5:
                d = l if k % 2 == 0 else l2
                e(f"v_add_f32 {d}, {d}, {S(k-2)}")
        e(f"v_add_f32 {l}, {l}, {S(20)}")
        e(f"v_add_f32 {l2}, {l2}, {S(21)}")
        e(f"v_add_f32 {l}, {l}, {l2}")
        run(xlane_ops(l, "v_add_f32"))
        e(f"v_rcp_f32 {l}, {l}")
        for k in range(11):
            e(f"v_mul_f32 {S(2*k)}, {S(2*k)}, {l}")
            e(f"v_mul_f32 {S(2*k+1)}, {S(2*k+1)}, {l}")
            if k > 0:
                e(f"v_cvt_pk_bf16_f32 {pd(k-1)}, {S(2*k-2)}, {S(2*k-1)}")
        e(f"v_cvt_pk_bf16_f32 {pd(10)}, {S(20)}, {S(21)}")

    ASTEP = 1024 if r128 else 128

    def job_reads(j):
        F = Fb[j % D]
        ops = []
        tag = f"j{j}"
        if j < 8:
            base = (j % 4) * 2 * TILEB
            for i in range(3):
                ops.append(T(f"ds_read_b64_tr_b16 {F(4*i,2)}, {V(vGV+i if j < 4 else vVD+i)} offset:{base}", tag))
                ops.append(T(f"ds_read_b64_tr_b16 {F(4*i+2,2)}, {V(vGV+i if j < 4 else vVD+i)} offset:{base+TILEB}", tag))
        else:
            Tn = j - 8
            a, b = Tn >> 2, Tn & 3
            for u, slot in ((0, 0), (-1, 1), (1, 3), (2, 4), (3, 5), (4, 6), (5, 2)):
                if u >= 0:
                    ops.append(T(f"ds_read_b64_tr_b16 {F(2*slot,2)}, {V(vVR+b)} offset:{ASTEP*a + TILEB*u}", tag))
                else:
                    ops.append(T(f"ds_read_b64_tr_b16 {F(2*slot,2)}, {V(vVG)} offset:{8192+32*Tn}", tag))
        return ops

    def acc(Tn, odd):
        return R("v", O.b + 8 * (Tn % 4) + 4 * odd)

    def job_mfmas(j):
        F = Fb[j % D]
        if j < 8:
            return [T(f"v_mfma_f32_16x16x32_bf16 {OG(4*i,4)}, {F(4*i,4)}, {PG(4*j,4)}, " + ("0" if j == 0 else OG(4*i, 4)))
                    for i in range(3)]
        mf = []
        for ks in range(3):
            for odd in range(2):
                off = (0, 6, 10)[ks] if not odd else (6, 10, 2)[ks]
                d = acc(j - 8, odd)
                mf.append(T(f"v_mfma_f32_16x16x32_bf16 {d(0,4)}, {F(off,4)}, {Ps[odd](4*ks,4)}, " + ("0" if ks == 0 else d(0, 4))))
        return mf

    def cvt_ops(Tn):
        ops = []
        for odd in range(2):
            d = acc(Tn, odd)
            ops += [T(f"v_cvt_pk_bf16_f32 {d(0)}, {d(0)}, {d(1)}"), T(f"v_cvt_pk_bf16_f32 {d(1)}, {d(2)}, {d(3)}")]
        return ops

    def stage_ops(Tn):
        return [T(f"ds_write_b64 {V(vOW+(Tn&3))}, {acc(Tn, odd)(0,2)} offset:{2048*odd}", "ow") for odd in range(2)]

    quads = lambda r, n: [R(r.f, r.b + 4 * i) for i in range(n)]
    HB = [R("v", 252)] + quads(Kt[1], 6) + quads(R("a", 244), 3) + quads(R("a", 16), 2)

    def readback_ops(c):
        return [T(f"ds_read_b128 {HB[4*c+i](0,4)}, {V(vOR)} offset:{1024*i}", f"or{c}_{i}") for i in range(4)]

    def store_ops(c, first):
        ops = []
        for i in range(4):
            va = vSTM if (first and i == 0) else vST
            txt = f"buffer_store_dwordx4 {HB[4*c+i](0,4)}, {V(va)}, {SO}, s50 offen offset:{128*c} {sf0 if first else sf}"
            ops.append(lambda i=i, txt=txt: (e(f"s_add_i32 s50, s57, {3072*i}"), e.wait(lg=f"or{c}_{i}"), e(txt, tag="O")))
        return ops

    def do_job(j, last, mem, valu):
        rd = job_reads(j - 1 + D) if (j >= 1 and j - 1 + D <= last) else []
        mm = []
        mem = list(mem)
        while rd or mem:
            if rd:
                mm.append(rd.pop(0))
            if mem:
                mm.append(mem.pop(0))
        e.wait(lg=f"j{j}")
        weave(job_mfmas(j), mm, list(valu))

    ncall = [0]
    CB = R("v", 192); W = R("v", 72)

    def pv_pair():
        def cond_store(c):
            sl, sv = list(e.lg), list(e.vm)
            lab = f"L_hold{c}" if subs else f"L_hold{c}_{ncall[0]}"
            e("s_cmp_eq_u32 s56, 0")
            e(f"s_cbranch_scc1 {lab}")
            run(store_ops(c, False))
            e.label(lab)
            e.lg[:] = sl
            if ncall[0] == 0:
                e.vm[:] = sv
        for Tn in range(12):
            if Tn == sync:
                sv = list(e.vm)
                lab = "L_nosync" if subs else f"L_nosync{ncall[0]}"
                e("s_cmp_lg_u32 s56, 0")
                e(f"s_cbranch_scc1 {lab}")
                if q2in:
                    load_q(2)
                if q3pos == 0:
                    load_q(3)
                q3o = load_q_ops(3) if q3pos == 1 else []
                run(q3o[:q3split])
                e(f"s_waitcnt vmcnt({12 if q3pos == 0 else 6 + q3split})")
                e("s_barrier")
                run(q3o[q3split:])
                e.label(lab)
                if ncall[0] == 0:
                    assert (sv[-1] == "V2") if q2in else (sv[-6:] == ["Q2"] * 6 and sv[-7] == "V2")
                    e.vm[:] = ["Q2"] * 6 + (["Q3"] * 6 if q3pos < 2 else [])
                else:
                    e.vm[:] = sv
            if Tn == chk:
                check_arrival(e, CB, W, SW, vL, vT, sum(pace[3:]))
            mem = stage_ops(Tn - 3) if Tn >= 3 else []
            if Tn in (6, 10):
                mem = mem + readback_ops((Tn - 6) // 4)
            do_job(8 + Tn, 19, mem, cvt_ops(Tn - 2) if Tn >= 2 else [])
            if Tn in (7, 11):
                cond_store((Tn - 7) // 4)
        run(stage_ops(9))
        run(cvt_ops(10)); run(cvt_ops(11))
        run(stage_ops(10)); run(stage_ops(11))
        run(readback_ops(2))
        cond_store(2)
        ncall[0] += 1

    def k_stream():
        if pfpos == 0:
            prefetch_code()
        cst = capture(consts_early) + [t.replace("s44", "s48") for t in capture(consts_rest)]
        cuts_c = [0, 0, 0] + [(len(cst) * k) // 8 for k in range(9)]
        for k, g in enumerate(groups):
            load_group(g, vKA, SK, lf, "K")
            if pfpos == k + 1:
                prefetch_code()
            if k == 3:
                load_g()
            lo, hi = cuts_c[k], cuts_c[k + 1]
            while hi < len(cst) and hi > lo and cst[hi - 1].startswith(("s_cmp", "s_add_u32 s16", "s_add_u32 s20")):
                hi += 1
                cuts_c[k + 1] = hi
            for t in cst[lo:hi]:
                e(t)
        load_q(0, kcap)
        for t in cst[cuts_c[10]:]:
            e(t)
        if not q1late:
            load_q(1, kcap)

    if kcapE is None:
        k_stream()
    else:
        e("s_getreg_b32 s50, hwreg(HW_REG_XCC_ID, 0, 1)")
        e("s_cmp_eq_u32 s50, 0")
        e("s_cbranch_scc1 L_keven")
        sv = list(e.vm)
        k_stream()
        so = list(e.vm)
        e("s_branch L_kdone")
        e.label("L_keven")
        e.vm[:] = sv
        kcapO, kcap = kcap, kcapE
        k_stream()
        kcap = kcapO
        e.label("L_kdone")
        e.vm[:] = so if len(so) >= len(e.vm) else e.vm
    edge_bias(0)
    stamp()
    gq = [T(f"ds_read_b128 {QG(4*s,4)}, {V(vGR)} offset:{7168+64*s}", "qg") for s in range(6)]
    gk = [T(f"ds_read_b128 {KG(4*s,4)}, {V(vGR)} offset:{6144+64*s}", "kg") for s in range(6)]
    e.wait(vm="K")
    if gearly:
        run(gq + gk); gq = gk = []
    e("s_barrier")
    if lite == "k":
        seq[0] = 100; stamp()
    krd = lambda us: [T(f"ds_read_b128 {Kt[u](4*s,4)}, {V(vCR+(s&1))} offset:{u*TILEB + 1024*(s>>1)}", "kc") for u in us for s in range(6)]
    if not khalf:
        rds = gq + krd((2, 3, 4, 5, 0, 1, 6, 7)) + gk
        q1 = load_q_ops(1) if q1late else []
        for k, o in enumerate(rds):
            if k % 10 == 0 and q1:
                q1.pop(0)()
            o()
        e.wait(lg="all")
        e("s_barrier")
    else:
        e("s_bitcmp1_b32 s3, 0")
        e("s_cbranch_scc1 L_kodd")
        sl, sv = list(e.lg), list(e.vm)
        for par in (0, 1):
            if par:
                e("s_branch L_kjoin")
                e.label("L_kodd")
                e.lg[:] = sl; e.vm[:] = sv; vnext[0] = 0
            run(krd((4, 5, 6, 7) if par == 0 else (0, 1, 2, 3)))
            e.wait(lg="all")
            e("s_barrier")
            rds = krd((2, 3, 0, 1) if par == 0 else (4, 5, 6, 7))
            for k, o in enumerate(rds):
                if k % 6 == 0 and k // 6 < khalf:
                    load_v(1)
                o()
        e.label("L_kjoin")
        e.wait(lg="all")
        e("s_barrier")
    if lite == "k":
        stamp(); seq[0] = 1
    load_v(nv0)
    stamp()
    load_v(vsched[0])
    e.wait(lg="all")
    for s in range(6):
        for u in range(4):
            c = "0" if s == 0 else SG(4*u, 4)
            e(f"v_mfma_f32_16x16x32_bf16 {SG(4*u,4)}, {Kt[2+u](4*s,4)}, {QG(4*s,4)}, {c}")
    load_v(vsched[1])
    e(f"v_mov_b32 {l2}, 0")
    e(f"v_mov_b32 {V(vT+4)}, {XCH+512}")
    e("s_lshl_b32 s51, s3, 2")
    e(f"v_add_u32 {V(vT+11)}, s51, {V(vMX)}")
    e(f"v_max3_f32 {m}, {SG(0)}, {SG(1)}, {SG(2)}")
    for k in range(3, 15, 2):
        e(f"v_max3_f32 {m}, {m}, {SG(k)}, {SG(k+1)}")
    e(f"v_max_f32 {m}, {m}, {SG(15)}")
    run(xlane_ops(m, "v_max_f32"))
    e(f"ds_write_b32 {V(vT+11)}, {m}")
    e(f"ds_write_b32 {V(vT+4)}, {l2}")
    e.wait(vm="Q0")
    load_v(vsched[2])
    scores(0)
    load_v(vsched[3])
    edge_bias(1)
    call("F_sm0", lambda: softmax(0))
    stamp()
    e.wait(vm="Q1")
    load_v(vsched[4])
    scores(1)
    load_v(vsched[5])
    call("F_sm1", lambda: softmax(1))
    load_v(vsched[6])
    stamp()
    e.wait(lg="all")
    e("s_barrier")
    e(f"ds_read_b128 {V(vT+4,4)}, {V(vMX)}", tag="mx")
    load_v(vsched[7])
    e.wait(lg="all")
    e(f"v_max3_f32 {m}, {V(vT+4)}, {V(vT+5)}, {V(vT+6)}")
    e(f"v_max_f32 {m}, {m}, {V(vT+7)}")
    e(f"v_mul_f32 {V(vT+8)}, s49, {m}")
    for k in range(16):
        e(f"v_fma_f32 {SG(k)}, {SG(k)}, s49, -{V(vT+8)}")
    for k in range(16):
        e(f"v_exp_f32 {SG(k)}, {SG(k)}")
    e(f"v_add_f32 {l}, {SG(0)}, {SG(1)}")
    for k in range(2, 16):
        e(f"v_add_f32 {l}, {l}, {SG(k)}")
    for k in range(8):
        e(f"v_cvt_pk_bf16_f32 {QG(k)}, {SG(2*k)}, {SG(2*k+1)}")
    run(xlane_ops(l, "v_add_f32"))
    e(f"ds_write_b128 {V(vPW)}, {QG(0,4)} offset:6144")
    e(f"ds_write_b128 {V(vPW)}, {QG(4,4)} offset:7168")
    e(f"ds_write_b32 {V(vT+11)}, {l} offset:256")
    vcap = vcap2
    load_v(15)
    if not q2in:
        load_q(2)
    for i in range(3):
        e(f"v_add_u32 {V(vVD+i)}, {8*TILEB}, {V(vGV+i)}")
    edge_bias(2)
    e("s_mov_b32 s56, 0")
    e("s_mov_b32 s61, 0")
    stamp()
    e.wait(vm="V01", lg="all")
    e("s_barrier")
    for ks in range(8):
        e(f"ds_read_b128 {PG(4*ks,4)}, {V(vPR)} offset:{(ks//2)*SCRB + (ks%2)*1024}", tag="pg")
    e(f"ds_read_b128 {V(vT+4,4)}, {V(vMX)} offset:256", tag="lx")
    for j in range(8, 8 + D - 1):
        run(job_reads(j))
    entry_lg = [t for t in e.lg if t in ("j8", "j9", "j10")]
    e.lg[:] = entry_lg
    call("F_pv", pv_pair)
    stamp()
    if probe:
        e("s_getreg_b32 s96, hwreg(HW_REG_IB_STS)")
    for j in range(D):
        run(job_reads(j))
    q3 = load_q_ops(3) if q3pos == 2 else []
    for j in range(8):
        valu = []
        if j == 4:
            valu = [T(f"v_add_f32 {V(vT+9)}, {V(vT+4)}, {V(vT+5)}"), T(f"v_add_f32 {V(vT+9)}, {V(vT+9)}, {V(vT+6)}"),
                    T(f"v_add_f32 {V(vT+9)}, {V(vT+9)}, {V(vT+7)}")]
        do_job(j, 7, q3[j:j+1], valu)
    stamp()
    if probe:
        e("s_getreg_b32 s97, hwreg(HW_REG_IB_STS)")
    e("s_mov_b32 s57, s42")
    held = [o for c in range(3) for o in store_ops(c, True)]
    if imajor:
        held = [held[4 * c + i] for i in range(4) for c in range(3)]
    cuts = [sum(pace[:k]) for k in range(len(pace) + 1)]
    hs = lambda k: held[cuts[k]:cuts[k+1]]
    assert cuts[-1] == 12
    e.wait(vm="Q2")
    parts = [T(f"buffer_store_dwordx2 {V(vT+8,2)}, {V(vML)}, {SW}, 0 offen sc1", "part")]
    parts += [T(f"buffer_store_dwordx4 {OG(4*i,4)}, {V(vWS)}, {SW}, 0 offen offset:{64*i} sc1", "part") for i in range(3)]
    scores(2, parts + hs(0) + hs(1))
    run(hs(2))
    stamp()
    if probe:
        e("s_getreg_b32 s98, hwreg(HW_REG_IB_STS)")
    fstamp()
    edge_bias(3)
    call("F_sm0", lambda: softmax(0))
    stamp()
    fstamp()
    e.wait(vm=["Q3", "part"])
    if lite == "r":
        seq[0] = 200; stamp(); seq[0] = 9
    e(f"v_mov_b32 {V(vT+5)}, 1")
    e(f"v_mov_b32 {V(vT+4)}, {XCH+512}")
    e("s_mov_b64 exec, 1")
    e(f"ds_add_rtn_u32 {V(vPR)}, {V(vT+4)}, {V(vT+5)}", tag="cnt")
    e("s_mov_b64 exec, -1")
    for b in range(4):
        e(f"v_add_u32 {V(vVR+b)}, {2*TILEB}, {V(vVR+b)}")
    e.wait(lg="all")
    e(f"v_readfirstlane_b32 s61, {V(vPR)}")
    e("s_cmp_lg_u32 s61, 3")
    e("s_cbranch_scc1 L_nosig")
    e("s_lshl_b32 s44, s40, 2")
    e(f"v_mov_b32 {V(vT+4)}, s44")
    e(f"v_mov_b32 {V(vPW)}, 1")
    e("s_mov_b64 exec, 1")
    sv = list(e.vm)
    e(f"buffer_atomic_add {V(vPW)}, {V(vT+4)}, {SD}, 0 offen sc0", tag="atom")
    e.vm[:] = sv + ["sigmark"]
    e("s_mov_b64 exec, -1")
    e.label("L_nosig")
    run(hs(3))
    pre = [o for j in range(8, 8 + D - 1) for o in job_reads(j)]
    mix = list(pre)
    for k, o in enumerate(hs(4)):
        mix.insert((len(pre) * (2 * k + 1)) // (2 * len(hs(4))) + k, o)
    scores(3, mix)
    run(hs(5))
    stamp()
    fstamp()
    call("F_sm1", lambda: softmax(1))
    run(hs(6))
    if wb:
        if wb == "w0":
            e("s_cmp_lg_u32 s3, 0")
            e("s_cbranch_scc1 L_nowb")
        e("buffer_wbl2 sc1")
        if wb == "w0":
            e.label("L_nowb")
    stamp()
    fstamp()
    if chk < 0:
        check_arrival(e, CB, W, SW, vL, vT, len(e.vm) - 1 - e.vm.index("sigmark"))
    e("s_mov_b32 s56, 1")
    e(f"s_add_i32 s57, s42, {2*TILEB}")
    assert e.lg == entry_lg, (e.lg, entry_lg)
    call("F_pv", pv_pair)
    stamp()
    fstamp()
    fstamp(True)
    e("s_cmp_lg_u32 s61, 7")
    e("s_cbranch_scc1 L_fin")
    e("s_waitcnt vmcnt(12)")
    e(f"v_max3_f32 {m}, {W(0)}, {W(2)}, {W(4)}")
    e(f"v_max3_f32 {m}, {m}, {W(6)}, {W(8)}")
    e(f"v_max3_f32 {m}, {m}, {W(10)}, {W(12)}")
    e(f"v_max_f32 {m}, {m}, {W(14)}")
    for s in range(8):
        e(f"v_sub_f32 {W(2*s)}, {W(2*s)}, {m}")
    for s in range(8):
        e(f"v_exp_f32 {W(2*s)}, {W(2*s)}")
    e(f"v_mul_f32 {l}, {W(0)}, {W(1)}")
    for s in range(1, 8):
        e(f"v_fmac_f32 {l}, {W(2*s)}, {W(2*s+1)}")
    e(f"v_rcp_f32 {l}, {l}")
    X = R("v", 120)
    for s in range(8):
        for k in range(6):
            if s == 0:
                e(f"v_mul_f32 {X(k)}, {W(0)}, {CB(k)}")
            else:
                e(f"v_fmac_f32 {X(k)}, {W(2*s)}, {CB(6*s+k)}")
    for k in range(6):
        e(f"v_mul_f32 {X(k)}, {X(k)}, {l}")
    for k in range(3):
        e(f"v_cvt_pk_bf16_f32 {X(k)}, {X(2*k)}, {X(2*k+1)}")
    e(f"v_mul_u32_u24 {tmp}, 12, {V(vL)}")
    e(f"buffer_store_dwordx3 {X(0,3)}, {tmp}, {SO}, 0 offen {sf}")
    e.label("L_fin")
    if stamps:
        e("s_waitcnt vmcnt(0)")
        stamp()
        e("s_load_dwordx2 s[20:21], s[0:1], 56")
        e("s_waitcnt lgkmcnt(0)")
        e("s_mov_b32 s22, 0x1000000")
        e("s_lshl_b32 s44, s2, 2")
        e("s_add_u32 s44, s44, s3")
        e("s_lshl_b32 s44, s44, 6")
        e("s_add_u32 s44, s44, 0x100000")
        e(f"v_mov_b32 {V(vT+1)}, 0")
        if probe:
            for k, reg in enumerate((96, 97, 98)):
                e(f"v_mov_b32 {V(vT)}, s{reg}")
                e(f"buffer_store_dword {V(vT)}, {V(vT+1)}, {SW}, s44 offen offset:{48+4*k}")
                e("s_nop 1")
        e(f"v_mov_b32 {V(vT)}, s61")
        e(f"buffer_store_dword {V(vT)}, {V(vT+1)}, {SW}, s44 offen offset:60")
        e("s_nop 1")
        for k in range(nst[0]):
            e(f"v_mov_b32 {V(vT)}, s{64+2*k}")
            e(f"buffer_store_dword {V(vT)}, {V(vT+1)}, {SW}, s44 offen offset:{4*k}")
            e("s_nop 1")
    e.label("L_end")
    e("s_endpgm")
    text = e.finish() + "L_codeend:\n"
    if nostore:
        text = "\n".join(l for l in text.split("\n") if not (l.strip().startswith("buffer_store_dwordx4") and "s[16:19]" in l))
        text = text.replace("s_waitcnt vmcnt(12)", "s_waitcnt vmcnt(0)")
    if qlin:
        text = text.replace(", v14, s[4:7]", ", v248, s[4:7]").replace(", v15, s[4:7]", ", v250, s[4:7]")
        text = text.replace("    s_barrier\n", "    v_add_u32 v250, 3072, v248\n    s_barrier\n", 1).replace("    s_waitcnt lgkmcnt(0)\n", "    s_waitcnt lgkmcnt(0)\n    v_add_u32 v250, 3072, v248\n", 1)
    if strip:
        drop = ("v_mfma", "ds_read_b64_tr", "ds_write_b64", "v_exp", "v_fma_f32", "v_max3", "v_cvt", "v_mul_f32", "v_add_f32",
                "v_mov_b32_dpp", "v_permlane", "v_max_f32", "v_rcp") + (("ds_read_b128",) if strip == 2 else ())
        text = "\n".join(l for l in text.split("\n") if not l.strip().startswith(drop))
    full = HEADER.format(lds=LDS_TOTAL, kn=KN) + text + FOOTER.format(kn=KN)
    if pf:
        full = full.replace("CODE_LAST", str(code_size(full.replace("CODE_LAST", "0x1234"), KN) - 128))
    return full


def check_arrival(e, CB, W, SW, vL, vT, cnt):
    e("s_cmp_lg_u32 s61, 3")
    e("s_cbranch_scc1 L_notlast")
    e(f"s_waitcnt vmcnt({cnt})")
    e("v_readfirstlane_b32 s61, v28")
    e("s_cmp_lg_u32 s61, 7")
    e("s_cbranch_scc1 L_notlast")
    sv = list(e.vm)
    e(f"v_lshrrev_b32 {V(vT+4)}, 5, {V(vL)}")
    e(f"v_and_b32 {V(vT+5)}, 31, {V(vL)}")
    e(f"v_mul_u32_u24 {V(vT+5)}, 24, {V(vT+5)}")
    e(f"v_mul_u32_u24 {V(vT+6)}, 768, {V(vT+4)}")
    e(f"v_add_u32 {V(vT+5)}, {V(vT+5)}, {V(vT+6)}")
    e(f"v_lshlrev_b32 {V(vT+4)}, 6, {V(vT+4)}")
    e("s_mov_b32 s50, 12288")
    for k in range(4):
        e(f"buffer_load_dwordx4 {W(4*k,4)}, {V(vT+4)}, {SW}, s50 offen offset:{16*k} sc1")
    for s in range(8):
        e(f"s_mov_b32 s50, {s*1536}")
        e(f"buffer_load_dwordx4 {CB(6*s,4)}, {V(vT+5)}, {SW}, s50 offen sc1")
        e(f"buffer_load_dwordx2 {CB(6*s+4,2)}, {V(vT+5)}, {SW}, s50 offen offset:16 sc1")
    e.vm[:] = sv
    e.label("L_notlast")


if __name__ == "__main__":
    import ast
    out = sys.argv[1]
    kw = {}
    for a in sys.argv[2:]:
        k, v = a.split("=", 1)
        try:
            kw[k] = ast.literal_eval(v)
        except Exception:
            kw[k] = v
    open(out, "w").write(gen(**kw))
```

```python
import sys, struct
from asmdsl import Asm, code_size

KN = "standalone__global_local_windowed_global_tokens__prompt_kernel"
HEADB = 786432
TILEB = 6144
VIMG = 320 * 384
SCRB = 9216
XCH = VIMG + 4 * SCRB
LDS_TOTAL = XCH + 1024
SCALE = 192 ** -0.5 * 1.4426950408889634
BIG = 0xF1000000


def f2u(x):
    return struct.unpack("<I", struct.pack("<f", x))[0]


HEADER = """; Kernarg layout (64 bytes, pointers only, base s[0:1]):
;
; @launch grid=(256,1,1) block=(256,1,1) lds={lds}
.amdgcn_target "amdgcn-amd-amdhsa--gfx950"
.text
.globl {kn}
.p2align 8
.type {kn},@function
{kn}:
"""
FOOTER = """
.section .rodata,"a"
.p2align 6
.amdhsa_kernel {kn}
  .amdhsa_next_free_vgpr 512
  .amdhsa_next_free_sgpr {nsgpr}
  .amdhsa_accum_offset 256
  .amdhsa_group_segment_fixed_size 0
  .amdhsa_kernarg_size 64
  .amdhsa_user_sgpr_count 2
  .amdhsa_user_sgpr_kernarg_segment_ptr 1
  .amdhsa_system_sgpr_workgroup_id_x 1
  .amdhsa_float_denorm_mode_32 3
.end_amdhsa_kernel
"""


def V(i, n=1):
    return f"v{i}" if n == 1 else f"v[{i}:{i+n-1}]"


def A(i, n=1):
    return f"a{i}" if n == 1 else f"a[{i}:{i+n-1}]"


class R:
    def __init__(self, f, b):
        self.f, self.b = f, b

    def __call__(self, off=0, n=1):
        i = self.b + off
        return f"{self.f}{i}" if n == 1 else f"{self.f}[{i}:{i+n-1}]"


def gen(lf="nt", sf="sc1", stamps=False, gf="", pf=True, qf=None, vf=None, pfall=False, r128=True, nv0=4, chk=3, vcap2=None, imajor=True, strip=None, nohalo=False, sf0=None, wb=None, vsched=(1, 1, 1, 1, 1, 1, 1, 1), subs=True, fine=False, pace=(0, 0, 0, 0, 0, 6, 6), sync=5, q3pos=0, q2in=True, kcap=9, vcap=None, q1late=False, probe=False, gearly=True, khalf=False, lite=(2, 6, 9, 12, 13), q3split=0, pf1=True, pfpos=1, zedge=True, kcapE=None, nostore=False, qlin=False, gorder=None, shf=None, hf=None, kcap0=None, nk0=5, gpos=3, span=None, nob3=False):
    e = Asm()
    qf = lf if qf is None else qf
    vf = lf if vf is None else vf
    sf0 = sf if sf0 is None else sf0
    SQ, SK, SV, SO, SW, SD = "s[4:7]", "s[8:11]", "s[12:15]", "s[16:19]", "s[20:23]", "s[24:27]"
    vL, vLin, vKA, vLow = 0, 1, 2, 3
    vCW, vCR, vOW, vOR, vQA, vQB, vVR, vVG = 4, 7, 9, 13, 14, 15, 16, 20
    vVD, vGR, vGV, vPW, vPR, vMX, vWS, vML = 21, 24, 25, 28, 29, 30, 31, 32
    vJ, vG4, vBig = 33, 34, 35
    vT = 36
    vST, vSTM = 248, 249
    TRI = [V(4), V(5), V(6), V(190)]
    B = R("v", 48)
    Ss = [R("v", 72), R("v", 96)]
    Ps = [R("v", 120), R("v", 132)]
    O = R("v", 144)
    Kt = [R("a", 24 * u) for u in range(8)]
    KG = R("a", 192)
    Qt = [R("v", 192), R("v", 220), R("v", 192), R("v", 220)]
    Fb = [R("v", 176), R("a", 216), R("a", 230), R("a", 0)]
    D = len(Fb)
    QG = R("v", 144); SG = R("v", 168)
    PG = R("v", 72); OG = R("v", 104)
    m, tmp, l, l2 = V(vT), V(vT + 1), V(vT + 2), V(vT + 3)
    nst = [0]

    def fstamp(real=False):
        if fine:
            k = nst[0]
            e(f"{'s_memrealtime' if real else 's_memtime'} s[{64+2*k}:{65+2*k}]")
            e("s_waitcnt lgkmcnt(0)")
            nst[0] += 1

    seq = [0]

    def stamp():
        seq[0] += 1
        if stamps == "lite" and seq[0] not in ((1, 101, 102, 2, 6, 13) if lite == "k" else (2, 5, 6, 201, 13) if lite == "r" else lite):
            return
        if stamps and not fine:
            k = nst[0]
            e(f"s_memrealtime s[{64+2*k}:{65+2*k}]")
            e("s_waitcnt lgkmcnt(0)")
            nst[0] += 1

    def T(text, tag=None):
        return lambda: e(text, tag=tag)

    def run(ops):
        for o in ops:
            o()

    def call(name, fn):
        if subs:
            e.call(name, fn)
        else:
            fn()

    e("s_cmp_ge_u32 s2, 256")
    e("s_cbranch_scc1 L_end")
    e("s_load_dwordx2 s[8:9], s[0:1], 8")
    e("s_load_dwordx2 s[4:5], s[0:1], 0")
    e("s_load_dwordx2 s[12:13], s[0:1], 16")
    e("s_load_dwordx2 s[16:17], s[0:1], 40")
    e("s_load_dwordx2 s[24:25], s[0:1], 48")
    e("s_load_dwordx2 s[20:21], s[0:1], 56")
    if stamps:
        e("s_memrealtime s[64:65]")
        nst[0] = 1
    if pf:
        e("s_getpc_b64 s[62:63]")
        e("v_lshlrev_b32 v46, 7, v0")
    e("v_lshrrev_b32 v1, 6, v0")
    e(f"v_and_b32 {V(vL)}, 63, v0")
    e("v_readfirstlane_b32 s3, v1")
    e("s_and_b32 s40, s2, 7")
    e("s_lshr_b32 s41, s2, 3")
    e("s_lshl_b32 s40, s40, 2")
    e("s_lshr_b32 s44, s41, 3")
    e("s_add_u32 s40, s40, s44")
    e("s_and_b32 s41, s41, 7")
    e(f"v_lshlrev_b32 {V(vLin)}, 4, {V(vL)}")
    e(f"s_mul_i32 s45, s40, {HEADB}")
    e("s_lshl_b32 s60, s41, 2")
    e("s_add_u32 s60, s60, s3")
    e(f"s_mul_i32 s42, s60, {4*TILEB}")
    e("s_lshl_b32 s60, s60, 6")
    e(f"s_mul_i32 s43, s3, {SCRB}")
    e(f"s_add_u32 s43, s43, {VIMG}")
    if r128:
        e(f"v_lshrrev_b32 {V(vT)}, 3, {V(vL)}")
        e(f"v_and_b32 {V(vT+1)}, 7, {V(vL)}")
        e(f"v_mul_u32_u24 {V(vT)}, 384, {V(vT)}")
        e(f"v_lshl_add_u32 {V(vST)}, {V(vT+1)}, 4, {V(vT)}")
        e(f"v_lshrrev_b32 {V(vT)}, 3, {V(vL)}")
        e(f"v_lshlrev_b32 {V(vT)}, 4, {V(vT)}")
        e(f"v_xor_b32 {V(vKA)}, {V(vT)}, {V(vST)}")
        e("s_mul_i32 s46, s41, 98304")
        e("s_mul_i32 s47, s3, 3072")
        e(f"s_add_i32 s46, s46, {-32*384}")
        e("s_add_i32 s46, s46, s47")
    e(f"s_mov_b32 s10, {HEADB}")
    e("s_mov_b32 s11, 0x20000")
    e(f"s_mov_b32 s6, {HEADB}")
    e("s_mov_b32 s7, 0x20000")
    e(f"s_mov_b32 s14, {HEADB}")
    e("s_mov_b32 s15, 0x20000")
    e("s_waitcnt lgkmcnt(0)")
    for b in (8, 4, 12):
        e(f"s_add_u32 s{b}, s{b}, s45")
        e(f"s_addc_u32 s{b+1}, s{b+1}, 0")

    def prefetch_code():
        if not pf:
            return
        if pf1:
            e("s_lshr_b32 s50, s2, 3")
            e("s_lshl_b32 s50, s50, 2")
            e("s_add_u32 s50, s50, s3")
            e("s_lshl_b32 s50, s50, 7")
            e("s_min_u32 s50, s50, CODE_LAST")
            e("v_mov_b32 v46, s50")
            sv = list(e.vm)
            e("global_load_dword v47, v46, s[62:63]")
            e.vm[:] = sv
            return
        if not pfall:
            e("s_cmp_ge_u32 s2, 16")
            e("s_cbranch_scc1 L_nopf")
        e("v_min_u32 v46, CODE_LAST, v46")
        sv = list(e.vm)
        e("global_load_dword v47, v46, s[62:63]")
        e.vm[:] = sv
        if not pfall:
            e.label("L_nopf")

    def load_g():
        for off, srd in ((6144, SK), (7168, SQ), (8192, SV)):
            e(f"s_add_u32 m0, s43, {off}")
            e.cap(kcap)
            e(f"buffer_load_dwordx4 {V(vLin)}, {srd}, 0 offen {gf} lds", tag="g")

    def load_q_ops(t):
        e(f"s_add_i32 s44, s42, {t*TILEB}")
        ops = []
        for L in range(3):
            ops.append(T(f"buffer_load_dwordx4 {Qt[t](8*L,4)}, {V(vQA)}, {SQ}, s44 offen offset:{128*L} {qf}", f"Q{t}"))
            ops.append(T(f"buffer_load_dwordx4 {Qt[t](8*L+4,4)}, {V(vQB)}, {SQ}, s44 offen offset:{128*L} {qf}", f"Q{t}"))
        return ops

    def load_q(t, cap=None):
        for o in load_q_ops(t):
            e.cap(cap)
            o()

    groups = list(gorder) if gorder else [0, 32, 4, 36, 8, 12, 16, 20, 24, 28]
    vnext = [0]

    def load_group(g, va, srd, fl, tag, cols=(0, 1, 2)):
        if nohalo and g in (0, 36):
            return
        e(f"s_add_u32 m0, s47, {g*3072 + 896*cols[0]}")
        e(f"s_add_i32 s44, s46, {g*3072}")
        if g < 4:
            e("s_max_i32 s44, s44, 0")
        if g > 32:
            e(f"s_min_i32 s44, s44, {2040*384}")
        if shf is not None and g in (4, 32):
            fl = shf
        if hf is not None and g in (0, 36):
            fl = hf
        nrec = {SK: "s10", SV: "s14"}[srd]
        if zedge and g in (0, 36):
            e(f"s_cmp_eq_u32 s41, {0 if g == 0 else 7}")
            e(f"s_cselect_b32 {nrec}, 0, {HEADB}")
        for mm in cols:
            if mm != cols[0]:
                e("s_add_u32 m0, m0, 896")
            e.cap(kcap if tag == "K" else vcap)
            e(f"buffer_load_dwordx4 {V(va)}, {srd}, s44 offen offset:{128*mm} {fl} lds", tag=tag)
        if zedge and g in (0, 36):
            e(f"s_mov_b32 {nrec}, {HEADB}")

    def load_v(n=1):
        for _ in range(n):
            k = vnext[0]
            if k >= 15:
                return
            if k < 10:
                load_group(([8, 12, 24, 28, 0, 32, 4, 36, 16, 20] if khalf else groups)[k], vVD, SV, vf, "V01", (0, 1))
            else:
                for g in groups[2*(k-10):2*(k-10)+2]:
                    load_group(g, vVD, SV, vf, "V2", (2,))
            vnext[0] += 1

    def consts_early():
        j, g, t0, t1 = vJ, vT, vT + 1, vT + 2
        e(f"v_and_b32 {V(j)}, 15, {V(vL)}")
        e(f"v_lshrrev_b32 {V(g)}, 4, {V(vL)}")
        e(f"v_and_b32 {V(t0)}, 7, {V(j)}")
        e(f"v_mul_u32_u24 {V(t0)}, 384, {V(t0)}")
        e(f"v_lshl_add_u32 {V(t0)}, {V(g)}, 4, {V(t0)}")
        e(f"v_and_b32 {V(vQB)}, 8, {V(j)}")
        e(f"v_lshl_add_u32 {V(vQA)}, {V(vQB)}, 3, {V(t0)}")
        e(f"v_xor_b32 {V(vQB)}, 64, {V(vQA)}")
        e(f"v_add_u32 {V(vQB)}, 3072, {V(vQB)}")
        e(f"v_lshrrev_b32 {V(t0)}, 3, {V(vL)}")
        e(f"v_and_b32 {V(t0)}, 6, {V(t0)}")
        e(f"v_lshlrev_b32 {V(t0)}, 4, {V(t0)}")
        e(f"v_xor_b32 {V(vVD)}, {V(t0)}, {V(vST)}")
        e(f"v_lshrrev_b32 {V(t0)}, 3, {V(j)}")
        e(f"v_mul_u32_u24 {V(t1)}, 3072, {V(t0)}")
        e(f"v_and_b32 {V(t0)}, 7, {V(j)}")
        e(f"v_lshl_add_u32 {V(t1)}, {V(t0)}, 7, {V(t1)}")
        e(f"v_xor_b32 {V(t0)}, {V(t0)}, {V(g)}")
        e(f"v_lshl_add_u32 {V(t1)}, {V(t0)}, 4, {V(t1)}")
        e(f"s_mul_i32 s50, s3, {4*TILEB}")
        e(f"v_add_u32 {V(vCR)}, s50, {V(t1)}")
        e(f"v_xor_b32 {V(vCR+1)}, 64, {V(vCR)}")
        e(f"v_and_b32 {V(t0)}, 1, {V(j)}")
        e(f"v_mul_u32_u24 {V(t0)}, 384, {V(t0)}")
        e(f"v_lshl_add_u32 {V(t0)}, {V(g)}, 4, {V(t0)}")
        e(f"v_add_u32 {V(vGR)}, s43, {V(t0)}")

    def consts_rest():
        j, g, t0, t1, t2 = vJ, vT, vT + 1, vT + 2, vT + 3
        e(f"v_lshrrev_b32 {V(g)}, 4, {V(vL)}")
        e(f"v_lshlrev_b32 {V(vG4)}, 2, {V(g)}")
        e(f"v_mov_b32 {V(vBig)}, {BIG:#x}")
        e(f"v_lshlrev_b32 {V(t1)}, 7, {V(j)}")
        e(f"v_and_b32 {V(t0)}, 1, {V(g)}")
        e(f"v_lshl_add_u32 {V(t1)}, {V(t0)}, 3, {V(t1)}")
        e(f"v_add_u32 {V(t1)}, s43, {V(t1)}")
        e(f"v_lshrrev_b32 {V(t2)}, 1, {V(g)}")
        e(f"v_and_b32 {V(t0)}, 7, {V(j)}")
        e(f"v_xor_b32 {V(t2)}, {V(t2)}, {V(t0)}")
        for b in range(4):
            e(f"v_xor_b32 {V(t0)}, {2*b}, {V(t2)}")
            e(f"v_lshl_add_u32 {V(vOW+b)}, {V(t0)}, 4, {V(t1)}")
        e(f"v_lshrrev_b32 {V(t0)}, 3, {V(vL)}")
        e(f"v_and_b32 {V(t1)}, 7, {V(vL)}")
        e(f"v_xor_b32 {V(t2)}, {V(t0)}, {V(t1)}")
        e(f"v_lshlrev_b32 {V(t2)}, 4, {V(t2)}")
        e(f"v_lshl_add_u32 {V(t2)}, {V(t0)}, 7, {V(t2)}")
        e(f"v_add_u32 {V(vOR)}, s43, {V(t2)}")
        if not r128:
            e(f"v_mul_u32_u24 {V(t0)}, 384, {V(t0)}")
            e(f"v_lshl_add_u32 {V(vST)}, {V(t1)}, 4, {V(t0)}")
        e(f"v_and_b32 {V(t2)}, 3, {V(vL)}")
        if r128:
            e(f"v_bfe_u32 {V(t0)}, {V(vL)}, 2, 3")
            e(f"v_lshlrev_b32 {V(t1)}, 7, {V(t0)}")
            e(f"v_lshrrev_b32 {V(t0)}, 5, {V(vL)}")
            e(f"v_mul_u32_u24 {V(t0)}, 3072, {V(t0)}")
            e(f"v_add_u32 {V(t1)}, {V(t1)}, {V(t0)}")
        else:
            e(f"v_lshrrev_b32 {V(t0)}, 2, {V(vL)}")
            e(f"v_mul_u32_u24 {V(t1)}, 384, {V(t0)}")
        e(f"v_lshl_add_u32 {V(t1)}, {V(t2)}, 3, {V(t1)}")
        e(f"v_bfe_u32 {V(vT+4)}, {V(vL)}, 3, 2")
        e(f"s_mul_i32 s44, s3, {4*TILEB}")
        for b in range(4):
            e(f"v_xor_b32 {V(t0)}, {b}, {V(vT+4)}")
            e(f"v_lshl_add_u32 {V(t0)}, {V(t0)}, 5, {V(t1)}")
            e(f"v_add_u32 {V(vVR+b)}, s44, {V(t0)}")
        for i in range(3):
            e("s_mul_i32 s44, s3, 3")
            e(f"s_add_u32 s44, s44, {i}")
            e("s_and_b32 s50, s44, 3")
            e("s_lshr_b32 s44, s44, 2")
            e(f"s_lshl_b32 s44, s44, {10 if r128 else 7}")
            e(f"s_add_u32 s44, s44, {2*TILEB}")
            e(f"v_xor_b32 {V(t0)}, s50, {V(vT+4)}")
            e(f"v_lshl_add_u32 {V(t0)}, {V(t0)}, 5, {V(t1)}")
            e(f"v_add_u32 {V(vGV+i)}, s44, {V(t0)}")
        e(f"v_bfe_u32 {V(t0)}, {V(vL)}, 2, 1")
        e(f"v_mul_u32_u24 {V(t0)}, 384, {V(t0)}")
        e(f"v_lshl_add_u32 {V(t0)}, {V(t2)}, 3, {V(t0)}")
        e(f"v_add_u32 {V(vVG)}, s43, {V(t0)}")
        e(f"v_add_u32 {V(vPW)}, s43, {V(vLin)}")
        e(f"v_add_u32 {V(vPR)}, {VIMG + 6144}, {V(vLin)}")
        e(f"v_lshlrev_b32 {V(t0)}, 4, {V(j)}")
        e(f"v_add_u32 {V(vMX)}, {XCH}, {V(t0)}")
        e("s_mul_i32 s44, s41, 1536")
        e("s_mul_i32 s50, s3, 192")
        e("s_add_u32 s44, s44, s50")
        e(f"v_cmp_gt_u32 vcc, 2, {V(j)}")
        e(f"v_mul_u32_u24 {V(t0)}, 768, {V(j)}")
        e(f"v_lshl_add_u32 {V(t0)}, {V(g)}, 4, {V(t0)}")
        e(f"v_add_u32 {V(t0)}, s44, {V(t0)}")
        e(f"v_cndmask_b32 {V(vWS)}, {V(vBig)}, {V(t0)}, vcc")
        e("s_cmp_eq_u32 s3, 0")
        e("s_cselect_b32 s50, 2, 0")
        e(f"v_cmp_gt_u32 vcc, s50, {V(vL)}")
        e("s_lshl_b32 s44, s41, 3")
        e("s_add_u32 s44, s44, 12288")
        e(f"v_lshlrev_b32 {V(t0)}, 6, {V(j)}")
        e(f"v_add_u32 {V(t0)}, s44, {V(t0)}")
        e(f"v_cndmask_b32 {V(vML)}, {V(vBig)}, {V(t0)}, vcc")
        e("s_cmp_eq_u32 s60, 0")
        e("s_cselect_b32 s44, 16, 0")
        e(f"v_cmp_gt_u32 vcc, s44, {V(vL)}")
        e(f"s_mov_b32 s49, {f2u(SCALE):#x}")
        e("s_add_u32 s16, s16, s45")
        e("s_addc_u32 s17, s17, 0")
        e(f"v_cndmask_b32 {V(vSTM)}, {V(vST)}, {V(vBig)}, vcc")
        e(f"v_cmp_gt_u32 vcc, 16, {V(vL)}")
        e(f"s_mov_b32 s18, {HEADB}")
        e("s_mov_b32 s19, 0x20000")
        e(f"v_cndmask_b32 {B(20)}, {V(vBig)}, 0, vcc")
        e(f"v_cndmask_b32 {V(vLow)}, 0, {V(vBig)}, vcc")
        e(f"v_mov_b32 {B(22)}, {V(vBig)}")
        e(f"v_mov_b32 {B(21)}, {B(20)}")
        e(f"v_mov_b32 {B(23)}, {V(vBig)}")
        for r in range(4):
            e(f"v_add_u32 {V(vT+4+r)}, {r}, {V(vG4)}")
        for r in range(4):
            e(f"v_cmp_lt_u32 s[{52+2*r}:{53+2*r}], {V(vT+4+r)}, {V(j)}")
        for r in range(4):
            e(f"v_cndmask_b32 {B(r)}, 0, {V(vBig)}, s[{52+2*r}:{53+2*r}]")
        for r in range(4):
            e(f"v_cmp_gt_u32 s[{52+2*r}:{53+2*r}], {V(vT+4+r)}, {V(j)}")
        for r in range(4):
            e(f"v_cndmask_b32 {B(16+r)}, 0, {V(vBig)}, s[{52+2*r}:{53+2*r}]")
        for k in range(4, 16):
            e(f"v_mov_b32 {B(k)}, 0")
        e("s_lshl_b32 s44, s40, 14")
        e("s_add_u32 s20, s20, s44")
        e("s_addc_u32 s21, s21, 0")
        e("s_mov_b32 s22, 16384")
        e("s_mov_b32 s23, 0x20000")
        e("s_mov_b32 s26, 256")
        e("s_mov_b32 s27, 0x20000")

    def edge_bias(t):
        big, low = V(vBig), V(vLow)
        left = {0: [(TRI[r], B(r)) for r in range(4)] + [(B(k), big) for k in range(8)] + [(B(8), low), (B(9), low)],
                1: [(B(4), low), (B(5), low), (B(6), "0"), (B(7), "0"), (B(8), "0"), (B(9), "0")],
                2: [(B(2), TRI[2]), (B(3), TRI[3]), (B(4), "0"), (B(5), "0")],
                3: [(B(0), TRI[0]), (B(1), TRI[1])]}[t]
        e("s_cmp_lg_u32 s60, 0")
        e(f"s_cbranch_scc1 L_noleft{t}")
        for d, s_ in left:
            e(f"v_mov_b32 {d}, {s_}")
        if t == 2:
            e(f"v_min_f32 {B(0)}, {TRI[0]}, {low}")
            e(f"v_min_f32 {B(1)}, {TRI[1]}, {low}")
        e.label(f"L_noleft{t}")
        if t >= 2:
            e("s_cmp_lg_u32 s60, 1984")
            e(f"s_cbranch_scc1 L_noright{t}")
            for r in range(4):
                e(f"v_mov_b32 {B((16 if t == 2 else 12) + r)}, {big}")
            e.label(f"L_noright{t}")

    def capture(fn):
        nonlocal e
        real = e
        e = Asm()
        fn()
        lines = [i.text for i in e.lines]
        e = real
        return lines

    def xlane_ops(x, op):
        ops = []
        for sw in ("v_permlane32_swap_b32", "v_permlane16_swap_b32"):
            ops += [T(f"v_mov_b32 {tmp}, {x}"), T(f"{sw} {x}, {tmp}"), T(f"{op} {x}, {x}, {tmp}")]
        return ops

    def weave(mf, mem, valu):
        n = len(mf); dm = dv = 0
        for i, mo in enumerate(mf):
            mo()
            um = (len(mem) * (i + 1) + n - 1) // n
            uv = (len(valu) * (i + 1) + n - 1) // n
            run(mem[dm:um]); run(valu[dv:uv]); dm, dv = um, uv

    def qfix_ops(t, L):
        Q = Qt[t]
        a, b, x = 8 * L, 8 * L + 4, (24 if L == 0 else 8 * L - 4)
        ops = [T(f"v_mov_b32_dpp {Q(x+k)}, {Q(b+k)} row_ror:8 row_mask:0xf bank_mask:0xf") for k in range(4)]
        ops += [T(f"v_mov_b32_dpp {Q(x+k)}, {Q(a+k)} row_ror:8 row_mask:0xf bank_mask:0x3") for k in range(4)]
        ops += [T(f"v_mov_b32_dpp {Q(a+k)}, {Q(b+k)} quad_perm:[0,1,2,3] row_mask:0xf bank_mask:0xc") for k in range(4)]
        return ops

    def scores(t, mem=()):
        S, Q = Ss[t & 1], Qt[t]
        qop = [Q(0, 4), Q(24, 4), Q(8, 4), Q(4, 4), Q(16, 4), Q(12, 4)]
        mem = list(mem)
        run(qfix_ops(t, 0))
        for L in range(3):
            mf = []
            for s in (2 * L, 2 * L + 1):
                for u in range(6):
                    a_op = Kt[t + u](4*s, 4) if u < 5 else KG(4*s, 4)
                    c = B(4*u, 4) if s == 0 else S(4*u, 4)
                    mf.append(T(f"v_mfma_f32_16x16x32_bf16 {S(4*u,4)}, {a_op}, {qop[s]}, {c}"))
            part = mem[(len(mem) * L) // 3:(len(mem) * (L + 1)) // 3]
            weave(mf, part, qfix_ops(t, L + 1) if L < 2 else [])

    def softmax(par):
        S, P = Ss[par], Ps[par]
        cut = 8 if par else 2
        pd = lambda k: P(cut) if k == 10 else (P(k) if k < cut else P(k + 2))
        e(f"v_mov_b32 {P(cut+1)}, 0")
        e(f"v_max3_f32 {m}, {S(0)}, {S(1)}, {S(2)}")
        e(f"v_max3_f32 {l}, {S(3)}, {S(4)}, {S(5)}")
        for k in range(6, 22, 4):
            e(f"v_max3_f32 {m}, {m}, {S(k)}, {S(k+1)}")
            e(f"v_max3_f32 {l}, {l}, {S(k+2)}, {S(k+3)}")
        e(f"v_max_f32 {m}, {m}, {l}")
        run(xlane_ops(m, "v_max_f32"))
        e(f"v_mul_f32 {m}, s49, {m}")
        for k in range(22):
            e(f"v_fma_f32 {S(k)}, {S(k)}, s49, -{m}")
        for k in range(22):
            e(f"v_exp_f32 {S(k)}, {S(k)}")
            if k == 3:
                e(f"v_add_f32 {l}, {S(0)}, {S(1)}")
            elif k == 5:
                e(f"v_add_f32 {l2}, {S(2)}, {S(3)}")
            elif k > 5:
                d = l if k % 2 == 0 else l2
                e(f"v_add_f32 {d}, {d}, {S(k-2)}")
        e(f"v_add_f32 {l}, {l}, {S(20)}")
        e(f"v_add_f32 {l2}, {l2}, {S(21)}")
        e(f"v_add_f32 {l}, {l}, {l2}")
        run(xlane_ops(l, "v_add_f32"))
        e(f"v_rcp_f32 {l}, {l}")
        for k in range(11):
            e(f"v_mul_f32 {S(2*k)}, {S(2*k)}, {l}")
            e(f"v_mul_f32 {S(2*k+1)}, {S(2*k+1)}, {l}")
            if k > 0:
                e(f"v_cvt_pk_bf16_f32 {pd(k-1)}, {S(2*k-2)}, {S(2*k-1)}")
        e(f"v_cvt_pk_bf16_f32 {pd(10)}, {S(20)}, {S(21)}")

    ASTEP = 1024 if r128 else 128

    def job_reads(j):
        F = Fb[j % D]
        ops = []
        tag = f"j{j}"
        if j < 8:
            base = (j % 4) * 2 * TILEB
            for i in range(3):
                ops.append(T(f"ds_read_b64_tr_b16 {F(4*i,2)}, {V(vGV+i if j < 4 else vVD+i)} offset:{base}", tag))
                ops.append(T(f"ds_read_b64_tr_b16 {F(4*i+2,2)}, {V(vGV+i if j < 4 else vVD+i)} offset:{base+TILEB}", tag))
        else:
            Tn = j - 8
            a, b = Tn >> 2, Tn & 3
            for u, slot in ((0, 0), (-1, 1), (1, 3), (2, 4), (3, 5), (4, 6), (5, 2)):
                if u >= 0:
                    ops.append(T(f"ds_read_b64_tr_b16 {F(2*slot,2)}, {V(vVR+b)} offset:{ASTEP*a + TILEB*u}", tag))
                else:
                    ops.append(T(f"ds_read_b64_tr_b16 {F(2*slot,2)}, {V(vVG)} offset:{8192+32*Tn}", tag))
        return ops

    def acc(Tn, odd):
        return R("v", O.b + 8 * (Tn % 4) + 4 * odd)

    def job_mfmas(j):
        F = Fb[j % D]
        if j < 8:
            return [T(f"v_mfma_f32_16x16x32_bf16 {OG(4*i,4)}, {F(4*i,4)}, {PG(4*j,4)}, " + ("0" if j == 0 else OG(4*i, 4)))
                    for i in range(3)]
        mf = []
        for ks in range(3):
            for odd in range(2):
                off = (0, 6, 10)[ks] if not odd else (6, 10, 2)[ks]
                d = acc(j - 8, odd)
                mf.append(T(f"v_mfma_f32_16x16x32_bf16 {d(0,4)}, {F(off,4)}, {Ps[odd](4*ks,4)}, " + ("0" if ks == 0 else d(0, 4))))
        return mf

    def cvt_ops(Tn):
        ops = []
        for odd in range(2):
            d = acc(Tn, odd)
            ops += [T(f"v_cvt_pk_bf16_f32 {d(0)}, {d(0)}, {d(1)}"), T(f"v_cvt_pk_bf16_f32 {d(1)}, {d(2)}, {d(3)}")]
        return ops

    def stage_ops(Tn):
        return [T(f"ds_write_b64 {V(vOW+(Tn&3))}, {acc(Tn, odd)(0,2)} offset:{2048*odd}", "ow") for odd in range(2)]

    quads = lambda r, n: [R(r.f, r.b + 4 * i) for i in range(n)]
    HB = [R("v", 252)] + quads(Kt[1], 6) + quads(R("a", 244), 3) + quads(R("a", 16), 2)

    def readback_ops(c):
        return [T(f"ds_read_b128 {HB[4*c+i](0,4)}, {V(vOR)} offset:{1024*i}", f"or{c}_{i}") for i in range(4)]

    def store_ops(c, first):
        ops = []
        for i in range(4):
            va = vSTM if (first and i == 0) else vST
            txt = f"buffer_store_dwordx4 {HB[4*c+i](0,4)}, {V(va)}, {SO}, s50 offen offset:{128*c} {sf0 if first else sf}"
            ops.append(lambda i=i, txt=txt: (e(f"s_add_i32 s50, s57, {3072*i}"), e.wait(lg=f"or{c}_{i}"), e(txt, tag="O")))
        return ops

    def do_job(j, last, mem, valu):
        rd = job_reads(j - 1 + D) if (j >= 1 and j - 1 + D <= last) else []
        mm = []
        mem = list(mem)
        while rd or mem:
            if rd:
                mm.append(rd.pop(0))
            if mem:
                mm.append(mem.pop(0))
        e.wait(lg=f"j{j}")
        weave(job_mfmas(j), mm, list(valu))

    ncall = [0]
    CB = R("v", 192); W = R("v", 72)

    def pv_pair():
        def cond_store(c):
            sl, sv = list(e.lg), list(e.vm)
            lab = f"L_hold{c}" if subs else f"L_hold{c}_{ncall[0]}"
            e("s_cmp_eq_u32 s56, 0")
            e(f"s_cbranch_scc1 {lab}")
            run(store_ops(c, False))
            e.label(lab)
            e.lg[:] = sl
            if ncall[0] == 0:
                e.vm[:] = sv
        for Tn in range(12):
            if Tn == sync:
                sv = list(e.vm)
                lab = "L_nosync" if subs else f"L_nosync{ncall[0]}"
                e("s_cmp_lg_u32 s56, 0")
                e(f"s_cbranch_scc1 {lab}")
                if q2in:
                    load_q(2)
                if q3pos == 0:
                    load_q(3)
                q3o = load_q_ops(3) if q3pos == 1 else []
                run(q3o[:q3split])
                e(f"s_waitcnt vmcnt({12 if q3pos == 0 else 6 + q3split})")
                e("s_barrier")
                run(q3o[q3split:])
                e.label(lab)
                if ncall[0] == 0:
                    assert (sv[-1] == "V2") if q2in else (sv[-6:] == ["Q2"] * 6 and sv[-7] == "V2")
                    e.vm[:] = ["Q2"] * 6 + (["Q3"] * 6 if q3pos < 2 else [])
                else:
                    e.vm[:] = sv
            if Tn == chk:
                check_arrival(e, CB, W, SW, vL, vT, sum(pace[3:]))
            mem = stage_ops(Tn - 3) if Tn >= 3 else []
            if Tn in (6, 10):
                mem = mem + readback_ops((Tn - 6) // 4)
            do_job(8 + Tn, 19, mem, cvt_ops(Tn - 2) if Tn >= 2 else [])
            if Tn in (7, 11):
                cond_store((Tn - 7) // 4)
        run(stage_ops(9))
        run(cvt_ops(10)); run(cvt_ops(11))
        run(stage_ops(10)); run(stage_ops(11))
        run(readback_ops(2))
        cond_store(2)
        ncall[0] += 1

    def k_stream():
        nonlocal kcap
        kfin = kcap
        if pfpos == 0:
            prefetch_code()
        cst = capture(consts_early) + [t.replace("s44", "s48") for t in capture(consts_rest)]
        cuts_c = [0, 0, 0] + [(len(cst) * k) // 8 for k in range(9)]
        for k, g in enumerate(groups):
            kcap = kcap0 if (kcap0 is not None and k < nk0) else kfin
            load_group(g, vKA, SK, lf, "K")
            if pfpos == k + 1:
                prefetch_code()
            if k == gpos:
                load_g()
            lo, hi = cuts_c[k], cuts_c[k + 1]
            while hi < len(cst) and hi > lo and cst[hi - 1].startswith(("s_cmp", "s_add_u32 s16", "s_add_u32 s20")):
                hi += 1
                cuts_c[k + 1] = hi
            for t in cst[lo:hi]:
                e(t)
        load_q(0, kcap)
        for t in cst[cuts_c[10]:]:
            e(t)
        if not q1late:
            load_q(1, kcap)

    if kcapE is None:
        k_stream()
    else:
        e("s_getreg_b32 s50, hwreg(HW_REG_XCC_ID, 0, 1)")
        e("s_cmp_eq_u32 s50, 0")
        e("s_cbranch_scc1 L_keven")
        sv = list(e.vm)
        k_stream()
        so = list(e.vm)
        e("s_branch L_kdone")
        e.label("L_keven")
        e.vm[:] = sv
        kcapO, kcap = kcap, kcapE
        k_stream()
        kcap = kcapO
        e.label("L_kdone")
        e.vm[:] = so if len(so) >= len(e.vm) else e.vm
    edge_bias(0)
    stamp()
    gq = [T(f"ds_read_b128 {QG(4*s,4)}, {V(vGR)} offset:{7168+64*s}", "qg") for s in range(6)]
    gk = [T(f"ds_read_b128 {KG(4*s,4)}, {V(vGR)} offset:{6144+64*s}", "kg") for s in range(6)]
    e.wait(vm="K")
    if gearly:
        run(gq + gk); gq = gk = []
    e("s_barrier")
    if lite == "k":
        seq[0] = 100; stamp()
    krd = lambda us: [T(f"ds_read_b128 {Kt[u](4*s,4)}, {V(vCR+(s&1))} offset:{u*TILEB + 1024*(s>>1)}", "kc") for u in us for s in range(6)]
    if not khalf:
        rds = gq + krd((2, 3, 4, 5, 0, 1, 6, 7)) + gk
        q1 = load_q_ops(1) if q1late else []
        for k, o in enumerate(rds):
            if k % 10 == 0 and q1:
                q1.pop(0)()
            o()
        e.wait(lg="all")
        e("s_barrier")
    else:
        e("s_bitcmp1_b32 s3, 0")
        e("s_cbranch_scc1 L_kodd")
        sl, sv = list(e.lg), list(e.vm)
        for par in (0, 1):
            if par:
                e("s_branch L_kjoin")
                e.label("L_kodd")
                e.lg[:] = sl; e.vm[:] = sv; vnext[0] = 0
            run(krd((4, 5, 6, 7) if par == 0 else (0, 1, 2, 3)))
            e.wait(lg="all")
            e("s_barrier")
            rds = krd((2, 3, 0, 1) if par == 0 else (4, 5, 6, 7))
            for k, o in enumerate(rds):
                if k % 6 == 0 and k // 6 < khalf:
                    load_v(1)
                o()
        e.label("L_kjoin")
        e.wait(lg="all")
        e("s_barrier")
    if lite == "k":
        stamp(); seq[0] = 1
    load_v(nv0)
    stamp()
    load_v(vsched[0])
    e.wait(lg="all")
    for s in range(6):
        for u in range(4):
            c = "0" if s == 0 else SG(4*u, 4)
            e(f"v_mfma_f32_16x16x32_bf16 {SG(4*u,4)}, {Kt[2+u](4*s,4)}, {QG(4*s,4)}, {c}")
    load_v(vsched[1])
    e(f"v_mov_b32 {l2}, 0")
    e(f"v_mov_b32 {V(vT+4)}, {XCH+512}")
    e("s_lshl_b32 s51, s3, 2")
    e(f"v_add_u32 {V(vT+11)}, s51, {V(vMX)}")
    e(f"v_max3_f32 {m}, {SG(0)}, {SG(1)}, {SG(2)}")
    for k in range(3, 15, 2):
        e(f"v_max3_f32 {m}, {m}, {SG(k)}, {SG(k+1)}")
    e(f"v_max_f32 {m}, {m}, {SG(15)}")
    run(xlane_ops(m, "v_max_f32"))
    e(f"ds_write_b32 {V(vT+11)}, {m}")
    e(f"ds_write_b32 {V(vT+4)}, {l2}")
    e.wait(vm="Q0")
    load_v(vsched[2])
    scores(0)
    load_v(vsched[3])
    edge_bias(1)
    call("F_sm0", lambda: softmax(0))
    stamp()
    e.wait(vm="Q1")
    load_v(vsched[4])
    scores(1)
    load_v(vsched[5])
    call("F_sm1", lambda: softmax(1))
    load_v(vsched[6])
    stamp()
    e.wait(lg="all")
    e("s_barrier")
    e(f"ds_read_b128 {V(vT+4,4)}, {V(vMX)}", tag="mx")
    load_v(vsched[7])
    e.wait(lg="all")
    e(f"v_max3_f32 {m}, {V(vT+4)}, {V(vT+5)}, {V(vT+6)}")
    e(f"v_max_f32 {m}, {m}, {V(vT+7)}")
    e(f"v_mul_f32 {V(vT+8)}, s49, {m}")
    for k in range(16):
        e(f"v_fma_f32 {SG(k)}, {SG(k)}, s49, -{V(vT+8)}")
    for k in range(16):
        e(f"v_exp_f32 {SG(k)}, {SG(k)}")
    e(f"v_add_f32 {l}, {SG(0)}, {SG(1)}")
    for k in range(2, 16):
        e(f"v_add_f32 {l}, {l}, {SG(k)}")
    for k in range(8):
        e(f"v_cvt_pk_bf16_f32 {QG(k)}, {SG(2*k)}, {SG(2*k+1)}")
    run(xlane_ops(l, "v_add_f32"))
    e(f"ds_write_b128 {V(vPW)}, {QG(0,4)} offset:6144")
    e(f"ds_write_b128 {V(vPW)}, {QG(4,4)} offset:7168")
    e(f"ds_write_b32 {V(vT+11)}, {l} offset:256")
    vcap = vcap2
    load_v(15)
    if not q2in:
        load_q(2)
    for i in range(3):
        e(f"v_add_u32 {V(vVD+i)}, {8*TILEB}, {V(vGV+i)}")
    edge_bias(2)
    e("s_mov_b32 s56, 0")
    e("s_mov_b32 s61, 0")
    stamp()
    e.wait(vm="V01", lg="all")
    e("s_barrier")
    for ks in range(8):
        e(f"ds_read_b128 {PG(4*ks,4)}, {V(vPR)} offset:{(ks//2)*SCRB + (ks%2)*1024}", tag="pg")
    e(f"ds_read_b128 {V(vT+4,4)}, {V(vMX)} offset:256", tag="lx")
    for j in range(8, 8 + D - 1):
        run(job_reads(j))
    entry_lg = [t for t in e.lg if t in ("j8", "j9", "j10")]
    e.lg[:] = entry_lg
    call("F_pv", pv_pair)
    stamp()
    if probe:
        e("s_getreg_b32 s96, hwreg(HW_REG_IB_STS)")
    for j in range(D):
        run(job_reads(j))
    q3 = load_q_ops(3) if q3pos == 2 else []
    for j in range(8):
        valu = []
        if j == 4:
            valu = [T(f"v_add_f32 {V(vT+9)}, {V(vT+4)}, {V(vT+5)}"), T(f"v_add_f32 {V(vT+9)}, {V(vT+9)}, {V(vT+6)}"),
                    T(f"v_add_f32 {V(vT+9)}, {V(vT+9)}, {V(vT+7)}")]
        do_job(j, 7, q3[j:j+1], valu)
    stamp()
    if probe:
        e("s_getreg_b32 s97, hwreg(HW_REG_IB_STS)")
    e("s_mov_b32 s57, s42")
    held = [o for c in range(3) for o in store_ops(c, True)]
    if imajor:
        held = [held[4 * c + i] for i in range(4) for c in range(3)]
    cuts = [sum(pace[:k]) for k in range(len(pace) + 1)]
    hs = lambda k: held[cuts[k]:cuts[k+1]]
    assert cuts[-1] == 12
    e.wait(vm="Q2")
    parts = [T(f"buffer_store_dwordx2 {V(vT+8,2)}, {V(vML)}, {SW}, 0 offen sc1", "part")]
    parts += [T(f"buffer_store_dwordx4 {OG(4*i,4)}, {V(vWS)}, {SW}, 0 offen offset:{64*i} sc1", "part") for i in range(3)]
    scores(2, parts + hs(0) + hs(1))
    run(hs(2))
    stamp()
    if probe:
        e("s_getreg_b32 s98, hwreg(HW_REG_IB_STS)")
    fstamp()
    edge_bias(3)
    call("F_sm0", lambda: softmax(0))
    stamp()
    fstamp()
    e.wait(vm=["Q3", "part"])
    if lite == "r":
        seq[0] = 200; stamp(); seq[0] = 9
    e(f"v_mov_b32 {V(vT+5)}, 1")
    e(f"v_mov_b32 {V(vT+4)}, {XCH+512}")
    e("s_mov_b64 exec, 1")
    e(f"ds_add_rtn_u32 {V(vPR)}, {V(vT+4)}, {V(vT+5)}", tag="cnt")
    e("s_mov_b64 exec, -1")
    for b in range(4):
        e(f"v_add_u32 {V(vVR+b)}, {2*TILEB}, {V(vVR+b)}")
    e.wait(lg="all")
    e(f"v_readfirstlane_b32 s61, {V(vPR)}")
    e("s_cmp_lg_u32 s61, 3")
    e("s_cbranch_scc1 L_nosig")
    e("s_lshl_b32 s44, s40, 2")
    e(f"v_mov_b32 {V(vT+4)}, s44")
    e(f"v_mov_b32 {V(vPW)}, 1")
    e("s_mov_b64 exec, 1")
    sv = list(e.vm)
    e(f"buffer_atomic_add {V(vPW)}, {V(vT+4)}, {SD}, 0 offen sc0", tag="atom")
    e.vm[:] = sv + ["sigmark"]
    e("s_mov_b64 exec, -1")
    e.label("L_nosig")
    run(hs(3))
    pre = [o for j in range(8, 8 + D - 1) for o in job_reads(j)]
    mix = list(pre)
    for k, o in enumerate(hs(4)):
        mix.insert((len(pre) * (2 * k + 1)) // (2 * len(hs(4))) + k, o)
    scores(3, mix)
    run(hs(5))
    stamp()
    fstamp()
    if not nob3:
        call("F_sm1", lambda: softmax(1))
    run(hs(6))
    if wb:
        if wb == "w0":
            e("s_cmp_lg_u32 s3, 0")
            e("s_cbranch_scc1 L_nowb")
        e("buffer_wbl2 sc1")
        if wb == "w0":
            e.label("L_nowb")
    stamp()
    fstamp()
    if chk < 0:
        check_arrival(e, CB, W, SW, vL, vT, len(e.vm) - 1 - e.vm.index("sigmark"))
    e("s_mov_b32 s56, 1")
    e(f"s_add_i32 s57, s42, {2*TILEB}")
    assert e.lg == entry_lg, (e.lg, entry_lg)
    call("F_pv", pv_pair)
    stamp()
    fstamp()
    fstamp(True)
    e("s_cmp_lg_u32 s61, 7")
    e("s_cbranch_scc1 L_fin")
    e("s_waitcnt vmcnt(12)")
    e(f"v_max3_f32 {m}, {W(0)}, {W(2)}, {W(4)}")
    e(f"v_max3_f32 {m}, {m}, {W(6)}, {W(8)}")
    e(f"v_max3_f32 {m}, {m}, {W(10)}, {W(12)}")
    e(f"v_max_f32 {m}, {m}, {W(14)}")
    for s in range(8):
        e(f"v_sub_f32 {W(2*s)}, {W(2*s)}, {m}")
    for s in range(8):
        e(f"v_exp_f32 {W(2*s)}, {W(2*s)}")
    e(f"v_mul_f32 {l}, {W(0)}, {W(1)}")
    for s in range(1, 8):
        e(f"v_fmac_f32 {l}, {W(2*s)}, {W(2*s+1)}")
    e(f"v_rcp_f32 {l}, {l}")
    X = R("v", 120)
    for s in range(8):
        for k in range(6):
            if s == 0:
                e(f"v_mul_f32 {X(k)}, {W(0)}, {CB(k)}")
            else:
                e(f"v_fmac_f32 {X(k)}, {W(2*s)}, {CB(6*s+k)}")
    for k in range(6):
        e(f"v_mul_f32 {X(k)}, {X(k)}, {l}")
    for k in range(3):
        e(f"v_cvt_pk_bf16_f32 {X(k)}, {X(2*k)}, {X(2*k+1)}")
    e(f"v_mul_u32_u24 {tmp}, 12, {V(vL)}")
    e(f"buffer_store_dwordx3 {X(0,3)}, {tmp}, {SO}, 0 offen {sf}")
    e.label("L_fin")
    if stamps:
        e("s_waitcnt vmcnt(0)")
        stamp()
        e("s_load_dwordx2 s[20:21], s[0:1], 56")
        e("s_waitcnt lgkmcnt(0)")
        e("s_mov_b32 s22, 0x1000000")
        e("s_lshl_b32 s44, s2, 2")
        e("s_add_u32 s44, s44, s3")
        e("s_lshl_b32 s44, s44, 6")
        e("s_add_u32 s44, s44, 0x100000")
        e(f"v_mov_b32 {V(vT+1)}, 0")
        if probe:
            for k, reg in enumerate((96, 97, 98)):
                e(f"v_mov_b32 {V(vT)}, s{reg}")
                e(f"buffer_store_dword {V(vT)}, {V(vT+1)}, {SW}, s44 offen offset:{48+4*k}")
                e("s_nop 1")
        e(f"v_mov_b32 {V(vT)}, s61")
        e(f"buffer_store_dword {V(vT)}, {V(vT+1)}, {SW}, s44 offen offset:60")
        e("s_nop 1")
        for k in range(nst[0]):
            e(f"v_mov_b32 {V(vT)}, s{64+2*k}")
            e(f"buffer_store_dword {V(vT)}, {V(vT+1)}, {SW}, s44 offen offset:{4*k}")
            e("s_nop 1")
    if span:
        a, am, b, bm, Amp = span
        e("s_waitcnt vmcnt(0)")
        e("s_mov_b64 exec, 1")
        for slot, (k, md) in enumerate(((a, am), (b, bm))):
            src = f"s{64+2*k}"
            if md == "min":
                e(f"s_not_b32 s92, {src}"); src = "s92"
            e(f"v_mov_b32 v36, {src}")
            e(f"v_mov_b32 v37, {192 + 4*slot}")
            e(f"buffer_atomic_umax v36, v37, {SD}, 0 offen")
        e("s_waitcnt vmcnt(0)")
        e("v_mov_b32 v36, 1")
        e("v_mov_b32 v37, 188")
        e(f"buffer_atomic_add v36, v37, {SD}, 0 offen sc0")
        e("s_waitcnt vmcnt(0)")
        e("v_readfirstlane_b32 s92, v36")
        e("s_cmp_lg_u32 s92, 1023")
        e("s_cbranch_scc1 L_end")
        e("v_mov_b32 v38, 0")
        e("v_mov_b32 v39, 0")
        e("v_mov_b32 v37, 192")
        e(f"buffer_atomic_add v38, v37, {SD}, 0 offen sc0")
        e(f"buffer_atomic_add v39, v37, {SD}, 0 offen offset:4 sc0")
        e("s_waitcnt vmcnt(0)")
        e("v_readfirstlane_b32 s90, v38")
        e("v_readfirstlane_b32 s91, v39")
        if am == "min":
            e("s_not_b32 s90, s90")
        if bm == "min":
            e("s_not_b32 s91, s91")
        e("s_sub_u32 s90, s91, s90")
        e("s_min_u32 s90, s90, 4000")
        e(f"s_mul_i32 s90, s90, {Amp}")
        e("; AMPSPIN")
    e.label("L_end")
    e("s_endpgm")
    text = e.finish() + "L_codeend:\n    .fill 64, 4, 0xbf800000\n"
    if span:
        text = text.replace("    ; AMPSPIN\n", """    s_memrealtime s[92:93]
    s_waitcnt lgkmcnt(0)
    s_add_u32 s90, s90, s92
L_spin:
    s_memrealtime s[92:93]
    s_waitcnt lgkmcnt(0)
    s_sub_u32 s91, s92, s90
    s_cmp_lt_i32 s91, 0
    s_cbranch_scc1 L_spin
""")
    if nostore:
        text = "\n".join(l for l in text.split("\n") if not (l.strip().startswith("buffer_store_dwordx4") and "s[16:19]" in l))
        text = text.replace("s_waitcnt vmcnt(12)", "s_waitcnt vmcnt(0)")
    if qlin:
        text = text.replace(", v14, s[4:7]", ", v248, s[4:7]").replace(", v15, s[4:7]", ", v250, s[4:7]")
        text = text.replace("    s_barrier\n", "    v_add_u32 v250, 3072, v248\n    s_barrier\n", 1).replace("    s_waitcnt lgkmcnt(0)\n", "    s_waitcnt lgkmcnt(0)\n    v_add_u32 v250, 3072, v248\n", 1)
    if strip:
        drop = ("v_mfma", "ds_read_b64_tr", "ds_write_b64", "v_exp", "v_fma_f32", "v_max3", "v_cvt", "v_mul_f32", "v_add_f32",
                "v_mov_b32_dpp", "v_permlane", "v_max_f32", "v_rcp") + (("ds_read_b128",) if strip == 2 else ())
        text = "\n".join(l for l in text.split("\n") if not l.strip().startswith(drop))
    full = HEADER.format(lds=LDS_TOTAL, kn=KN) + text + FOOTER.format(kn=KN, nsgpr=100 if probe else 96)
    if pf:
        full = full.replace("CODE_LAST", str(code_size(full.replace("CODE_LAST", "0x1234"), KN) - 128))
    return full


def check_arrival(e, CB, W, SW, vL, vT, cnt):
    e("s_cmp_lg_u32 s61, 3")
    e("s_cbranch_scc1 L_notlast")
    e(f"s_waitcnt vmcnt({cnt})")
    e("v_readfirstlane_b32 s61, v28")
    e("s_cmp_lg_u32 s61, 7")
    e("s_cbranch_scc1 L_notlast")
    sv = list(e.vm)
    e(f"v_lshrrev_b32 {V(vT+4)}, 5, {V(vL)}")
    e(f"v_and_b32 {V(vT+5)}, 31, {V(vL)}")
    e(f"v_mul_u32_u24 {V(vT+5)}, 24, {V(vT+5)}")
    e(f"v_mul_u32_u24 {V(vT+6)}, 768, {V(vT+4)}")
    e(f"v_add_u32 {V(vT+5)}, {V(vT+5)}, {V(vT+6)}")
    e(f"v_lshlrev_b32 {V(vT+4)}, 6, {V(vT+4)}")
    e("s_mov_b32 s50, 12288")
    for k in range(4):
        e(f"buffer_load_dwordx4 {W(4*k,4)}, {V(vT+4)}, {SW}, s50 offen offset:{16*k} sc1")
    for s in range(8):
        e(f"s_mov_b32 s50, {s*1536}")
        e(f"buffer_load_dwordx4 {CB(6*s,4)}, {V(vT+5)}, {SW}, s50 offen sc1")
        e(f"buffer_load_dwordx2 {CB(6*s+4,2)}, {V(vT+5)}, {SW}, s50 offen offset:16 sc1")
    e.vm[:] = sv
    e.label("L_notlast")


if __name__ == "__main__":
    import ast
    out = sys.argv[1]
    kw = {}
    for a in sys.argv[2:]:
        k, v = a.split("=", 1)
        try:
            kw[k] = ast.literal_eval(v)
        except Exception:
            kw[k] = v
    open(out, "w").write(gen(**kw))
```

```python
import sys, struct
from asmdsl import Asm, code_size

KN = "standalone__global_local_windowed_global_tokens__prompt_kernel"
HEADB = 786432
TILEB = 6144
VIMG = 320 * 384
SCRB = 9216
XCH = VIMG + 4 * SCRB
LDS_TOTAL = XCH + 1024
SCALE = 192 ** -0.5 * 1.4426950408889634
BIG = 0xF1000000


def f2u(x):
    return struct.unpack("<I", struct.pack("<f", x))[0]


HEADER = """; Kernarg layout (64 bytes, pointers only, base s[0:1]):
;
; @launch grid=(256,1,1) block=(256,1,1) lds={lds}
.amdgcn_target "amdgcn-amd-amdhsa--gfx950"
.text
.globl {kn}
.p2align 8
.type {kn},@function
{kn}:
"""
FOOTER = """
.section .rodata,"a"
.p2align 6
.amdhsa_kernel {kn}
  .amdhsa_next_free_vgpr 512
  .amdhsa_next_free_sgpr {nsgpr}
  .amdhsa_accum_offset 256
  .amdhsa_group_segment_fixed_size 0
  .amdhsa_kernarg_size 64
  .amdhsa_user_sgpr_count 2
  .amdhsa_user_sgpr_kernarg_segment_ptr 1
  .amdhsa_system_sgpr_workgroup_id_x 1
  .amdhsa_float_denorm_mode_32 3
.end_amdhsa_kernel
"""


def V(i, n=1):
    return f"v{i}" if n == 1 else f"v[{i}:{i+n-1}]"


def A(i, n=1):
    return f"a{i}" if n == 1 else f"a[{i}:{i+n-1}]"


class R:
    def __init__(self, f, b):
        self.f, self.b = f, b

    def __call__(self, off=0, n=1):
        i = self.b + off
        return f"{self.f}{i}" if n == 1 else f"{self.f}[{i}:{i+n-1}]"


def gen(lf="nt", sf="sc1", stamps=False, gf="", pf=True, qf=None, vf=None, pfall=False, r128=True, nv0=4, chk=3, vcap2=None, imajor=True, strip=None, nohalo=False, sf0=None, wb=None, vsched=(1, 1, 1, 1, 1, 1, 1, 1), subs=True, fine=False, pace=(0, 0, 0, 0, 4, 4, 4), sync=5, q3pos=0, q2in=True, kcap=8, vcap=None, q1late=False, probe=False, gearly=True, khalf=False, lite=(2, 6, 9, 12, 13), q3split=0, pf1=True, pfpos=1, zedge=True, kcapE=None, nostore=False, qlin=False, gorder=None, shf=None, hf=None, kcap0=None, nk0=5, gpos=3, span=None, nob3=False, amp=None, early=False):
    e = Asm()
    qf = lf if qf is None else qf
    vf = lf if vf is None else vf
    sf0 = sf if sf0 is None else sf0
    SQ, SK, SV, SO, SW, SD = "s[4:7]", "s[8:11]", "s[12:15]", "s[16:19]", "s[20:23]", "s[24:27]"
    vL, vLin, vKA, vLow = 0, 1, 2, 3
    vCW, vCR, vOW, vOR, vQA, vQB, vVR, vVG = 4, 7, 9, 13, 14, 15, 16, 20
    vVD, vGR, vGV, vPW, vPR, vMX, vWS, vML = 21, 24, 25, 28, 29, 30, 31, 32
    vJ, vG4, vBig = 33, 34, 35
    vT = 36
    vST, vSTM = 248, 249
    TRI = [V(4), V(5), V(6), V(190)]
    B = R("v", 48)
    Ss = [R("v", 72), R("v", 96)]
    Ps = [R("v", 120), R("v", 132)]
    O = R("v", 144)
    Kt = [R("a", 24 * u) for u in range(8)]
    KG = R("a", 192)
    Qt = [R("v", 192), R("v", 220), R("v", 192), R("v", 220)]
    Fb = [R("v", 176), R("a", 216), R("a", 230), R("a", 0)]
    D = len(Fb)
    QG = R("v", 144); SG = R("v", 168)
    PG = R("v", 72); OG = R("v", 104)
    m, tmp, l, l2 = V(vT), V(vT + 1), V(vT + 2), V(vT + 3)
    nst = [0]

    def fstamp(real=False):
        if fine:
            k = nst[0]
            e(f"{'s_memrealtime' if real else 's_memtime'} s[{64+2*k}:{65+2*k}]")
            e("s_waitcnt lgkmcnt(0)")
            nst[0] += 1

    seq = [0]

    def stamp():
        seq[0] += 1
        if stamps == "lite" and seq[0] not in ((1, 101, 102, 2, 6, 13) if lite == "k" else (2, 5, 6, 201, 13) if lite == "r" else lite):
            return
        if stamps and not fine:
            k = nst[0]
            e(f"s_memrealtime s[{64+2*k}:{65+2*k}]")
            e("s_waitcnt lgkmcnt(0)")
            nst[0] += 1

    def T(text, tag=None):
        return lambda: e(text, tag=tag)

    def run(ops):
        for o in ops:
            o()

    def call(name, fn):
        if subs:
            e.call(name, fn)
        else:
            fn()

    e("s_cmp_ge_u32 s2, 256")
    e("s_cbranch_scc1 L_end")
    e("s_load_dwordx2 s[8:9], s[0:1], 8")
    e("s_load_dwordx2 s[4:5], s[0:1], 0")
    e("s_load_dwordx2 s[12:13], s[0:1], 16")
    e("s_load_dwordx2 s[16:17], s[0:1], 40")
    e("s_load_dwordx2 s[24:25], s[0:1], 48")
    e("s_load_dwordx2 s[20:21], s[0:1], 56")
    if stamps:
        e("s_memrealtime s[64:65]")
        nst[0] = 1
    if amp:
        e("s_memrealtime s[64:65]")
    if pf:
        e("s_getpc_b64 s[62:63]")
        e("v_lshlrev_b32 v46, 7, v0")
    e("v_lshrrev_b32 v1, 6, v0")
    e(f"v_and_b32 {V(vL)}, 63, v0")
    e("v_readfirstlane_b32 s3, v1")
    e("s_and_b32 s40, s2, 7")
    e("s_lshr_b32 s41, s2, 3")
    e("s_lshl_b32 s40, s40, 2")
    e("s_lshr_b32 s44, s41, 3")
    e("s_add_u32 s40, s40, s44")
    e("s_and_b32 s41, s41, 7")
    e(f"v_lshlrev_b32 {V(vLin)}, 4, {V(vL)}")
    e(f"s_mul_i32 s45, s40, {HEADB}")
    e("s_lshl_b32 s60, s41, 2")
    e("s_add_u32 s60, s60, s3")
    e(f"s_mul_i32 s42, s60, {4*TILEB}")
    e("s_lshl_b32 s60, s60, 6")
    e(f"s_mul_i32 s43, s3, {SCRB}")
    e(f"s_add_u32 s43, s43, {VIMG}")
    if r128:
        e(f"v_lshrrev_b32 {V(vT)}, 3, {V(vL)}")
        e(f"v_and_b32 {V(vT+1)}, 7, {V(vL)}")
        e(f"v_mul_u32_u24 {V(vT)}, 384, {V(vT)}")
        e(f"v_lshl_add_u32 {V(vST)}, {V(vT+1)}, 4, {V(vT)}")
        e(f"v_lshrrev_b32 {V(vT)}, 3, {V(vL)}")
        e(f"v_lshlrev_b32 {V(vT)}, 4, {V(vT)}")
        e(f"v_xor_b32 {V(vKA)}, {V(vT)}, {V(vST)}")
        e("s_mul_i32 s46, s41, 98304")
        e("s_mul_i32 s47, s3, 3072")
        e(f"s_add_i32 s46, s46, {-32*384}")
        e("s_add_i32 s46, s46, s47")
    e(f"s_mov_b32 s10, {HEADB}")
    e("s_mov_b32 s11, 0x20000")
    e(f"s_mov_b32 s6, {HEADB}")
    e("s_mov_b32 s7, 0x20000")
    e(f"s_mov_b32 s14, {HEADB}")
    e("s_mov_b32 s15, 0x20000")
    e("s_waitcnt lgkmcnt(0)")
    for b in (8, 4, 12):
        e(f"s_add_u32 s{b}, s{b}, s45")
        e(f"s_addc_u32 s{b+1}, s{b+1}, 0")

    def prefetch_code():
        if not pf:
            return
        if pf1:
            e("s_lshr_b32 s50, s2, 3")
            e("s_lshl_b32 s50, s50, 2")
            e("s_add_u32 s50, s50, s3")
            e("s_lshl_b32 s50, s50, 7")
            e("s_min_u32 s50, s50, CODE_LAST")
            e("v_mov_b32 v46, s50")
            sv = list(e.vm)
            e("global_load_dword v47, v46, s[62:63]")
            e.vm[:] = sv
            return
        if not pfall:
            e("s_cmp_ge_u32 s2, 16")
            e("s_cbranch_scc1 L_nopf")
        e("v_min_u32 v46, CODE_LAST, v46")
        sv = list(e.vm)
        e("global_load_dword v47, v46, s[62:63]")
        e.vm[:] = sv
        if not pfall:
            e.label("L_nopf")

    def load_g():
        for off, srd in ((6144, SK), (7168, SQ), (8192, SV)):
            e(f"s_add_u32 m0, s43, {off}")
            e.cap(kcap)
            e(f"buffer_load_dwordx4 {V(vLin)}, {srd}, 0 offen {gf} lds", tag="g")

    def load_q_ops(t):
        e(f"s_add_i32 s44, s42, {t*TILEB}")
        ops = []
        for L in range(3):
            ops.append(T(f"buffer_load_dwordx4 {Qt[t](8*L,4)}, {V(vQA)}, {SQ}, s44 offen offset:{128*L} {qf}", f"Q{t}"))
            ops.append(T(f"buffer_load_dwordx4 {Qt[t](8*L+4,4)}, {V(vQB)}, {SQ}, s44 offen offset:{128*L} {qf}", f"Q{t}"))
        return ops

    def load_q(t, cap=None):
        for o in load_q_ops(t):
            e.cap(cap)
            o()

    groups = list(gorder) if gorder else [0, 32, 4, 36, 8, 12, 16, 20, 24, 28]
    vnext = [0]

    def load_group(g, va, srd, fl, tag, cols=(0, 1, 2)):
        if nohalo and g in (0, 36):
            return
        e(f"s_add_u32 m0, s47, {g*3072 + 896*cols[0]}")
        e(f"s_add_i32 s44, s46, {g*3072}")
        if g < 4:
            e("s_max_i32 s44, s44, 0")
        if g > 32:
            e(f"s_min_i32 s44, s44, {2040*384}")
        if shf is not None and g in (4, 32):
            fl = shf
        if hf is not None and g in (0, 36):
            fl = hf
        nrec = {SK: "s10", SV: "s14"}[srd]
        if zedge and g in (0, 36):
            e(f"s_cmp_eq_u32 s41, {0 if g == 0 else 7}")
            e(f"s_cselect_b32 {nrec}, 0, {HEADB}")
        for mm in cols:
            if mm != cols[0]:
                e("s_add_u32 m0, m0, 896")
            e.cap(kcap if tag == "K" else vcap)
            e(f"buffer_load_dwordx4 {V(va)}, {srd}, s44 offen offset:{128*mm} {fl} lds", tag=tag)
        if zedge and g in (0, 36):
            e(f"s_mov_b32 {nrec}, {HEADB}")

    def load_v(n=1):
        for _ in range(n):
            k = vnext[0]
            if k >= 15:
                return
            if k < 10:
                load_group(([8, 12, 24, 28, 0, 32, 4, 36, 16, 20] if khalf else groups)[k], vVD, SV, vf, "V01", (0, 1))
            else:
                for g in groups[2*(k-10):2*(k-10)+2]:
                    load_group(g, vVD, SV, vf, "V2", (2,))
            vnext[0] += 1

    def consts_early():
        j, g, t0, t1 = vJ, vT, vT + 1, vT + 2
        e(f"v_and_b32 {V(j)}, 15, {V(vL)}")
        e(f"v_lshrrev_b32 {V(g)}, 4, {V(vL)}")
        e(f"v_and_b32 {V(t0)}, 7, {V(j)}")
        e(f"v_mul_u32_u24 {V(t0)}, 384, {V(t0)}")
        e(f"v_lshl_add_u32 {V(t0)}, {V(g)}, 4, {V(t0)}")
        e(f"v_and_b32 {V(vQB)}, 8, {V(j)}")
        e(f"v_lshl_add_u32 {V(vQA)}, {V(vQB)}, 3, {V(t0)}")
        e(f"v_xor_b32 {V(vQB)}, 64, {V(vQA)}")
        e(f"v_add_u32 {V(vQB)}, 3072, {V(vQB)}")
        e(f"v_lshrrev_b32 {V(t0)}, 3, {V(vL)}")
        e(f"v_and_b32 {V(t0)}, 6, {V(t0)}")
        e(f"v_lshlrev_b32 {V(t0)}, 4, {V(t0)}")
        e(f"v_xor_b32 {V(vVD)}, {V(t0)}, {V(vST)}")
        e(f"v_lshrrev_b32 {V(t0)}, 3, {V(j)}")
        e(f"v_mul_u32_u24 {V(t1)}, 3072, {V(t0)}")
        e(f"v_and_b32 {V(t0)}, 7, {V(j)}")
        e(f"v_lshl_add_u32 {V(t1)}, {V(t0)}, 7, {V(t1)}")
        e(f"v_xor_b32 {V(t0)}, {V(t0)}, {V(g)}")
        e(f"v_lshl_add_u32 {V(t1)}, {V(t0)}, 4, {V(t1)}")
        e(f"s_mul_i32 s50, s3, {4*TILEB}")
        e(f"v_add_u32 {V(vCR)}, s50, {V(t1)}")
        e(f"v_xor_b32 {V(vCR+1)}, 64, {V(vCR)}")
        e(f"v_and_b32 {V(t0)}, 1, {V(j)}")
        e(f"v_mul_u32_u24 {V(t0)}, 384, {V(t0)}")
        e(f"v_lshl_add_u32 {V(t0)}, {V(g)}, 4, {V(t0)}")
        e(f"v_add_u32 {V(vGR)}, s43, {V(t0)}")

    def consts_rest():
        j, g, t0, t1, t2 = vJ, vT, vT + 1, vT + 2, vT + 3
        e(f"v_lshrrev_b32 {V(g)}, 4, {V(vL)}")
        e(f"v_lshlrev_b32 {V(vG4)}, 2, {V(g)}")
        e(f"v_mov_b32 {V(vBig)}, {BIG:#x}")
        e(f"v_lshlrev_b32 {V(t1)}, 7, {V(j)}")
        e(f"v_and_b32 {V(t0)}, 1, {V(g)}")
        e(f"v_lshl_add_u32 {V(t1)}, {V(t0)}, 3, {V(t1)}")
        e(f"v_add_u32 {V(t1)}, s43, {V(t1)}")
        e(f"v_lshrrev_b32 {V(t2)}, 1, {V(g)}")
        e(f"v_and_b32 {V(t0)}, 7, {V(j)}")
        e(f"v_xor_b32 {V(t2)}, {V(t2)}, {V(t0)}")
        for b in range(4):
            e(f"v_xor_b32 {V(t0)}, {2*b}, {V(t2)}")
            e(f"v_lshl_add_u32 {V(vOW+b)}, {V(t0)}, 4, {V(t1)}")
        e(f"v_lshrrev_b32 {V(t0)}, 3, {V(vL)}")
        e(f"v_and_b32 {V(t1)}, 7, {V(vL)}")
        e(f"v_xor_b32 {V(t2)}, {V(t0)}, {V(t1)}")
        e(f"v_lshlrev_b32 {V(t2)}, 4, {V(t2)}")
        e(f"v_lshl_add_u32 {V(t2)}, {V(t0)}, 7, {V(t2)}")
        e(f"v_add_u32 {V(vOR)}, s43, {V(t2)}")
        if not r128:
            e(f"v_mul_u32_u24 {V(t0)}, 384, {V(t0)}")
            e(f"v_lshl_add_u32 {V(vST)}, {V(t1)}, 4, {V(t0)}")
        e(f"v_and_b32 {V(t2)}, 3, {V(vL)}")
        if r128:
            e(f"v_bfe_u32 {V(t0)}, {V(vL)}, 2, 3")
            e(f"v_lshlrev_b32 {V(t1)}, 7, {V(t0)}")
            e(f"v_lshrrev_b32 {V(t0)}, 5, {V(vL)}")
            e(f"v_mul_u32_u24 {V(t0)}, 3072, {V(t0)}")
            e(f"v_add_u32 {V(t1)}, {V(t1)}, {V(t0)}")
        else:
            e(f"v_lshrrev_b32 {V(t0)}, 2, {V(vL)}")
            e(f"v_mul_u32_u24 {V(t1)}, 384, {V(t0)}")
        e(f"v_lshl_add_u32 {V(t1)}, {V(t2)}, 3, {V(t1)}")
        e(f"v_bfe_u32 {V(vT+4)}, {V(vL)}, 3, 2")
        e(f"s_mul_i32 s44, s3, {4*TILEB}")
        for b in range(4):
            e(f"v_xor_b32 {V(t0)}, {b}, {V(vT+4)}")
            e(f"v_lshl_add_u32 {V(t0)}, {V(t0)}, 5, {V(t1)}")
            e(f"v_add_u32 {V(vVR+b)}, s44, {V(t0)}")
        e(f"v_xor_b32 {V(t0)}, s3, {V(vT+4)}")
        e(f"v_lshl_add_u32 {V(t0)}, {V(t0)}, 5, {V(t1)}")
        e(f"v_add_u32 {V(vGV)}, {2*TILEB}, {V(t0)}")
        e(f"v_add_u32 {V(vGV+1)}, {10*TILEB}, {V(t0)}")
        e(f"v_bfe_u32 {V(t0)}, {V(vL)}, 2, 1")
        e(f"v_mul_u32_u24 {V(t0)}, 384, {V(t0)}")
        e(f"v_lshl_add_u32 {V(t0)}, {V(t2)}, 3, {V(t0)}")
        e(f"v_add_u32 {V(vVG)}, s43, {V(t0)}")
        e(f"v_add_u32 {V(vPW)}, s43, {V(vLin)}")
        e(f"v_add_u32 {V(vPR)}, {VIMG + 6144}, {V(vLin)}")
        e(f"v_lshlrev_b32 {V(t0)}, 4, {V(j)}")
        e(f"v_add_u32 {V(vMX)}, {XCH}, {V(t0)}")
        e("s_mul_i32 s44, s41, 1536")
        e("s_lshl_b32 s50, s3, 6")
        e("s_add_u32 s44, s44, s50")
        e(f"v_cmp_gt_u32 vcc, 2, {V(j)}")
        e(f"v_mul_u32_u24 {V(t0)}, 768, {V(j)}")
        e(f"v_lshl_add_u32 {V(t0)}, {V(g)}, 4, {V(t0)}")
        e(f"v_add_u32 {V(t0)}, s44, {V(t0)}")
        e(f"v_cndmask_b32 {V(vWS)}, {V(vBig)}, {V(t0)}, vcc")
        e("s_cmp_eq_u32 s3, 0")
        e("s_cselect_b32 s50, 2, 0")
        e(f"v_cmp_gt_u32 vcc, s50, {V(vL)}")
        e("s_lshl_b32 s44, s41, 3")
        e("s_add_u32 s44, s44, 12288")
        e(f"v_lshlrev_b32 {V(t0)}, 6, {V(j)}")
        e(f"v_add_u32 {V(t0)}, s44, {V(t0)}")
        e(f"v_cndmask_b32 {V(vML)}, {V(vBig)}, {V(t0)}, vcc")
        e("s_cmp_eq_u32 s60, 0")
        e("s_cselect_b32 s44, 16, 0")
        e(f"v_cmp_gt_u32 vcc, s44, {V(vL)}")
        e(f"s_mov_b32 s49, {f2u(SCALE):#x}")
        e("s_add_u32 s16, s16, s45")
        e("s_addc_u32 s17, s17, 0")
        e(f"v_cndmask_b32 {V(vSTM)}, {V(vST)}, {V(vBig)}, vcc")
        e(f"v_cmp_gt_u32 vcc, 16, {V(vL)}")
        e(f"s_mov_b32 s18, {HEADB}")
        e("s_mov_b32 s19, 0x20000")
        e(f"v_cndmask_b32 {B(20)}, {V(vBig)}, 0, vcc")
        e(f"v_cndmask_b32 {V(vLow)}, 0, {V(vBig)}, vcc")
        e(f"v_mov_b32 {B(22)}, {V(vBig)}")
        e(f"v_mov_b32 {B(21)}, {B(20)}")
        e(f"v_mov_b32 {B(23)}, {V(vBig)}")
        for r in range(4):
            e(f"v_add_u32 {V(vT+4+r)}, {r}, {V(vG4)}")
        for r in range(4):
            e(f"v_cmp_lt_u32 s[{52+2*r}:{53+2*r}], {V(vT+4+r)}, {V(j)}")
        for r in range(4):
            e(f"v_cndmask_b32 {B(r)}, 0, {V(vBig)}, s[{52+2*r}:{53+2*r}]")
        for r in range(4):
            e(f"v_cmp_gt_u32 s[{52+2*r}:{53+2*r}], {V(vT+4+r)}, {V(j)}")
        for r in range(4):
            e(f"v_cndmask_b32 {B(16+r)}, 0, {V(vBig)}, s[{52+2*r}:{53+2*r}]")
        for k in range(4, 16):
            e(f"v_mov_b32 {B(k)}, 0")
        e("s_lshl_b32 s44, s40, 14")
        e("s_add_u32 s20, s20, s44")
        e("s_addc_u32 s21, s21, 0")
        e("s_mov_b32 s22, 16384")
        e("s_mov_b32 s23, 0x20000")
        e("s_mov_b32 s26, 256")
        e("s_mov_b32 s27, 0x20000")

    def edge_bias(t):
        big, low = V(vBig), V(vLow)
        left = {0: [(TRI[r], B(r)) for r in range(4)] + [(B(k), big) for k in range(8)] + [(B(8), low), (B(9), low)],
                1: [(B(4), low), (B(5), low), (B(6), "0"), (B(7), "0"), (B(8), "0"), (B(9), "0")],
                2: [(B(2), TRI[2]), (B(3), TRI[3]), (B(4), "0"), (B(5), "0")],
                3: [(B(0), TRI[0]), (B(1), TRI[1])]}[t]
        e("s_cmp_lg_u32 s60, 0")
        e(f"s_cbranch_scc1 L_noleft{t}")
        for d, s_ in left:
            e(f"v_mov_b32 {d}, {s_}")
        if t == 2:
            e(f"v_min_f32 {B(0)}, {TRI[0]}, {low}")
            e(f"v_min_f32 {B(1)}, {TRI[1]}, {low}")
        e.label(f"L_noleft{t}")
        if t >= 2:
            e("s_cmp_lg_u32 s60, 1984")
            e(f"s_cbranch_scc1 L_noright{t}")
            for r in range(4):
                e(f"v_mov_b32 {B((16 if t == 2 else 12) + r)}, {big}")
            e.label(f"L_noright{t}")

    def capture(fn):
        nonlocal e
        real = e
        e = Asm()
        fn()
        lines = [i.text for i in e.lines]
        e = real
        return lines

    def xlane_ops(x, op):
        ops = []
        for sw in ("v_permlane32_swap_b32", "v_permlane16_swap_b32"):
            ops += [T(f"v_mov_b32 {tmp}, {x}"), T(f"{sw} {x}, {tmp}"), T(f"{op} {x}, {x}, {tmp}")]
        return ops

    def weave(mf, mem, valu):
        n = len(mf); dm = dv = 0
        for i, mo in enumerate(mf):
            mo()
            um = (len(mem) * (i + 1) + n - 1) // n
            uv = (len(valu) * (i + 1) + n - 1) // n
            run(mem[dm:um]); run(valu[dv:uv]); dm, dv = um, uv

    def qfix_ops(t, L):
        Q = Qt[t]
        a, b, x = 8 * L, 8 * L + 4, (24 if L == 0 else 8 * L - 4)
        ops = [T(f"v_mov_b32_dpp {Q(x+k)}, {Q(b+k)} row_ror:8 row_mask:0xf bank_mask:0xf") for k in range(4)]
        ops += [T(f"v_mov_b32_dpp {Q(x+k)}, {Q(a+k)} row_ror:8 row_mask:0xf bank_mask:0x3") for k in range(4)]
        ops += [T(f"v_mov_b32_dpp {Q(a+k)}, {Q(b+k)} quad_perm:[0,1,2,3] row_mask:0xf bank_mask:0xc") for k in range(4)]
        return ops

    def scores(t, mem=()):
        S, Q = Ss[t & 1], Qt[t]
        qop = [Q(0, 4), Q(24, 4), Q(8, 4), Q(4, 4), Q(16, 4), Q(12, 4)]
        mem = list(mem)
        run(qfix_ops(t, 0))
        for L in range(3):
            mf = []
            for s in (2 * L, 2 * L + 1):
                for u in range(6):
                    a_op = Kt[t + u](4*s, 4) if u < 5 else KG(4*s, 4)
                    c = B(4*u, 4) if s == 0 else S(4*u, 4)
                    mf.append(T(f"v_mfma_f32_16x16x32_bf16 {S(4*u,4)}, {a_op}, {qop[s]}, {c}"))
            part = mem[(len(mem) * L) // 3:(len(mem) * (L + 1)) // 3]
            weave(mf, part, qfix_ops(t, L + 1) if L < 2 else [])

    def softmax(par):
        S, P = Ss[par], Ps[par]
        cut = 8 if par else 2
        pd = lambda k: P(cut) if k == 10 else (P(k) if k < cut else P(k + 2))
        e(f"v_mov_b32 {P(cut+1)}, 0")
        e(f"v_max3_f32 {m}, {S(0)}, {S(1)}, {S(2)}")
        e(f"v_max3_f32 {l}, {S(3)}, {S(4)}, {S(5)}")
        for k in range(6, 22, 4):
            e(f"v_max3_f32 {m}, {m}, {S(k)}, {S(k+1)}")
            e(f"v_max3_f32 {l}, {l}, {S(k+2)}, {S(k+3)}")
        e(f"v_max_f32 {m}, {m}, {l}")
        run(xlane_ops(m, "v_max_f32"))
        e(f"v_mul_f32 {m}, s49, {m}")
        for k in range(22):
            e(f"v_fma_f32 {S(k)}, {S(k)}, s49, -{m}")
        for k in range(22):
            e(f"v_exp_f32 {S(k)}, {S(k)}")
            if k == 3:
                e(f"v_add_f32 {l}, {S(0)}, {S(1)}")
            elif k == 5:
                e(f"v_add_f32 {l2}, {S(2)}, {S(3)}")
            elif k > 5:
                d = l if k % 2 == 0 else l2
                e(f"v_add_f32 {d}, {d}, {S(k-2)}")
        e(f"v_add_f32 {l}, {l}, {S(20)}")
        e(f"v_add_f32 {l2}, {l2}, {S(21)}")
        e(f"v_add_f32 {l}, {l}, {l2}")
        run(xlane_ops(l, "v_add_f32"))
        e(f"v_rcp_f32 {l}, {l}")
        for k in range(11):
            e(f"v_mul_f32 {S(2*k)}, {S(2*k)}, {l}")
            e(f"v_mul_f32 {S(2*k+1)}, {S(2*k+1)}, {l}")
            if k > 0:
                e(f"v_cvt_pk_bf16_f32 {pd(k-1)}, {S(2*k-2)}, {S(2*k-1)}")
        e(f"v_cvt_pk_bf16_f32 {pd(10)}, {S(20)}, {S(21)}")

    ASTEP = 1024 if r128 else 128

    def job_reads(j):
        F = Fb[j % D]
        ops = []
        tag = f"j{j}"
        if j < 8 or j >= 20:
            items = [(j, 0), (j, 1)] if j < 8 else [(ks, 2) for ks in range(3 * (j - 20), min(8, 3 * (j - 20) + 3))]
            for n, (ks, i) in enumerate(items):
                base = (ks % 4) * 2 * TILEB + 1024 * i
                ops.append(T(f"ds_read_b64_tr_b16 {F(4*n,2)}, {V(vGV + ks // 4)} offset:{base}", tag))
                ops.append(T(f"ds_read_b64_tr_b16 {F(4*n+2,2)}, {V(vGV + ks // 4)} offset:{base+TILEB}", tag))
        else:
            Tn = j - 8
            a, b = Tn >> 2, Tn & 3
            for u, slot in ((0, 0), (-1, 1), (1, 3), (2, 4), (3, 5), (4, 6), (5, 2)):
                if u >= 0:
                    ops.append(T(f"ds_read_b64_tr_b16 {F(2*slot,2)}, {V(vVR+b)} offset:{ASTEP*a + TILEB*u}", tag))
                else:
                    ops.append(T(f"ds_read_b64_tr_b16 {F(2*slot,2)}, {V(vVG)} offset:{8192+32*Tn}", tag))
        return ops

    def acc(Tn, odd):
        return R("v", O.b + 8 * (Tn % 4) + 4 * odd)

    def job_mfmas(j):
        F = Fb[j % D]
        if j < 8 or j >= 20:
            items = [(j, 0), (j, 1)] if j < 8 else [(ks, 2) for ks in range(3 * (j - 20), min(8, 3 * (j - 20) + 3))]
            return [T(f"v_mfma_f32_16x16x32_bf16 {OG(4*i,4)}, {F(4*n,4)}, {PG(4*ks,4)}, " + ("0" if ks == 0 else OG(4*i, 4)))
                    for n, (ks, i) in enumerate(items)]
        mf = []
        for ks in range(3):
            for odd in range(2):
                off = (0, 6, 10)[ks] if not odd else (6, 10, 2)[ks]
                d = acc(j - 8, odd)
                mf.append(T(f"v_mfma_f32_16x16x32_bf16 {d(0,4)}, {F(off,4)}, {Ps[odd](4*ks,4)}, " + ("0" if ks == 0 else d(0, 4))))
        return mf

    def cvt_ops(Tn):
        ops = []
        for odd in range(2):
            d = acc(Tn, odd)
            ops += [T(f"v_cvt_pk_bf16_f32 {d(0)}, {d(0)}, {d(1)}"), T(f"v_cvt_pk_bf16_f32 {d(1)}, {d(2)}, {d(3)}")]
        return ops

    def stage_ops(Tn):
        return [T(f"ds_write_b64 {V(vOW+(Tn&3))}, {acc(Tn, odd)(0,2)} offset:{2048*odd}", "ow") for odd in range(2)]

    quads = lambda r, n: [R(r.f, r.b + 4 * i) for i in range(n)]
    HB = [R("v", 252)] + quads(Kt[1], 6) + quads(R("a", 244), 3) + quads(R("a", 16), 2)

    def readback_ops(c):
        return [T(f"ds_read_b128 {HB[4*c+i](0,4)}, {V(vOR)} offset:{1024*i}", f"or{c}_{i}") for i in range(4)]

    def store_ops(c, first):
        ops = []
        for i in range(4):
            va = vSTM if (first and i == 0) else vST
            txt = f"buffer_store_dwordx4 {HB[4*c+i](0,4)}, {V(va)}, {SO}, s50 offen offset:{128*c} {sf0 if first else sf}"
            ops.append(lambda i=i, txt=txt: (e(f"s_add_i32 s50, s57, {3072*i}"), e.wait(lg=f"or{c}_{i}"), e(txt, tag="O")))
        return ops

    def do_job(j, last, mem, valu):
        rd = job_reads(j - 1 + D) if (j >= 1 and j - 1 + D <= last) else []
        mm = []
        mem = list(mem)
        while rd or mem:
            if rd:
                mm.append(rd.pop(0))
            if mem:
                mm.append(mem.pop(0))
        e.wait(lg=f"j{j}")
        weave(job_mfmas(j), mm, list(valu))

    ncall = [0]
    CB = R("v", 192); W = R("v", 72)

    def pv_pair():
        def cond_store(c):
            sl, sv = list(e.lg), list(e.vm)
            lab = f"L_hold{c}" if subs else f"L_hold{c}_{ncall[0]}"
            e("s_cmp_eq_u32 s56, 0")
            e(f"s_cbranch_scc1 {lab}")
            run(store_ops(c, False))
            e.label(lab)
            e.lg[:] = sl
            if ncall[0] == 0:
                e.vm[:] = sv
        for Tn in range(12):
            if Tn == sync:
                sv = list(e.vm)
                lab = "L_nosync" if subs else f"L_nosync{ncall[0]}"
                e("s_cmp_lg_u32 s56, 0")
                e(f"s_cbranch_scc1 {lab}")
                if q2in:
                    load_q(2)
                if q3pos == 0:
                    load_q(3)
                q3o = load_q_ops(3) if q3pos == 1 else []
                run(q3o[:q3split])
                e(f"s_waitcnt vmcnt({12 if q3pos == 0 else 6 + q3split})")
                e("s_barrier")
                run(q3o[q3split:])
                e.label(lab)
                if ncall[0] == 0:
                    assert (sv[-1] == "V2") if q2in else (sv[-6:] == ["Q2"] * 6 and sv[-7] == "V2")
                    e.vm[:] = ["Q2"] * 6 + (["Q3"] * 6 if q3pos < 2 else [])
                else:
                    e.vm[:] = sv
            if Tn == chk:
                check_arrival(e, CB, W, SW, vL, vT, sum(pace[3:]))
            mem = stage_ops(Tn - 3) if Tn >= 3 else []
            if Tn in (6, 10):
                mem = mem + readback_ops((Tn - 6) // 4)
            do_job(8 + Tn, 19, mem, cvt_ops(Tn - 2) if Tn >= 2 else [])
            if Tn in (7, 11):
                cond_store((Tn - 7) // 4)
        run(stage_ops(9))
        run(cvt_ops(10)); run(cvt_ops(11))
        run(stage_ops(10)); run(stage_ops(11))
        run(readback_ops(2))
        cond_store(2)
        ncall[0] += 1

    def k_stream():
        nonlocal kcap
        kfin = kcap
        if pfpos == 0:
            prefetch_code()
        cst = capture(consts_early) + [t.replace("s44", "s48") for t in capture(consts_rest)]
        cuts_c = [0, 0, 0] + [(len(cst) * k) // 8 for k in range(9)]
        for k, g in enumerate(groups):
            kcap = kcap0 if (kcap0 is not None and k < nk0) else kfin
            if early and k in (0, 1, 3, 5):
                e(f"s_memrealtime s[{64+2*nst[0]}:{65+2*nst[0]}]"); nst[0] += 1
            load_group(g, vKA, SK, lf, "K")
            if pfpos == k + 1:
                prefetch_code()
            if k == gpos:
                load_g()
            lo, hi = cuts_c[k], cuts_c[k + 1]
            while hi < len(cst) and hi > lo and cst[hi - 1].startswith(("s_cmp", "s_add_u32 s16", "s_add_u32 s20")):
                hi += 1
                cuts_c[k + 1] = hi
            for t in cst[lo:hi]:
                e(t)
        load_q(0, kcap)
        for t in cst[cuts_c[10]:]:
            e(t)
        if not q1late:
            load_q(1, kcap)

    if kcapE is None:
        k_stream()
    else:
        e("s_getreg_b32 s50, hwreg(HW_REG_XCC_ID, 0, 1)")
        e("s_cmp_eq_u32 s50, 0")
        e("s_cbranch_scc1 L_keven")
        sv = list(e.vm)
        k_stream()
        so = list(e.vm)
        e("s_branch L_kdone")
        e.label("L_keven")
        e.vm[:] = sv
        kcapO, kcap = kcap, kcapE
        k_stream()
        kcap = kcapO
        e.label("L_kdone")
        e.vm[:] = so if len(so) >= len(e.vm) else e.vm
    edge_bias(0)
    stamp()
    gq = [T(f"ds_read_b128 {QG(4*s,4)}, {V(vGR)} offset:{7168+64*s}", "qg") for s in range(6)]
    gk = [T(f"ds_read_b128 {KG(4*s,4)}, {V(vGR)} offset:{6144+64*s}", "kg") for s in range(6)]
    e.wait(vm="K")
    if gearly:
        run(gq + gk); gq = gk = []
    e("s_barrier")
    if lite == "k":
        seq[0] = 100; stamp()
    krd = lambda us: [T(f"ds_read_b128 {Kt[u](4*s,4)}, {V(vCR+(s&1))} offset:{u*TILEB + 1024*(s>>1)}", "kc") for u in us for s in range(6)]
    if not khalf:
        rds = gq + krd((2, 3, 4, 5, 0, 1, 6, 7)) + gk
        q1 = load_q_ops(1) if q1late else []
        for k, o in enumerate(rds):
            if k % 10 == 0 and q1:
                q1.pop(0)()
            o()
        e.wait(lg="all")
        e("s_barrier")
    else:
        e("s_bitcmp1_b32 s3, 0")
        e("s_cbranch_scc1 L_kodd")
        sl, sv = list(e.lg), list(e.vm)
        for par in (0, 1):
            if par:
                e("s_branch L_kjoin")
                e.label("L_kodd")
                e.lg[:] = sl; e.vm[:] = sv; vnext[0] = 0
            run(krd((4, 5, 6, 7) if par == 0 else (0, 1, 2, 3)))
            e.wait(lg="all")
            e("s_barrier")
            rds = krd((2, 3, 0, 1) if par == 0 else (4, 5, 6, 7))
            for k, o in enumerate(rds):
                if k % 6 == 0 and k // 6 < khalf:
                    load_v(1)
                o()
        e.label("L_kjoin")
        e.wait(lg="all")
        e("s_barrier")
    if lite == "k":
        stamp(); seq[0] = 1
    load_v(nv0)
    stamp()
    load_v(vsched[0])
    e.wait(lg="all")
    for s in range(6):
        for u in range(4):
            c = "0" if s == 0 else SG(4*u, 4)
            e(f"v_mfma_f32_16x16x32_bf16 {SG(4*u,4)}, {Kt[2+u](4*s,4)}, {QG(4*s,4)}, {c}")
    load_v(vsched[1])
    e(f"v_mov_b32 {l2}, 0")
    e(f"v_mov_b32 {V(vT+4)}, {XCH+512}")
    e("s_lshl_b32 s51, s3, 2")
    e(f"v_add_u32 {V(vT+11)}, s51, {V(vMX)}")
    e(f"v_max3_f32 {m}, {SG(0)}, {SG(1)}, {SG(2)}")
    for k in range(3, 15, 2):
        e(f"v_max3_f32 {m}, {m}, {SG(k)}, {SG(k+1)}")
    e(f"v_max_f32 {m}, {m}, {SG(15)}")
    run(xlane_ops(m, "v_max_f32"))
    e(f"ds_write_b32 {V(vT+11)}, {m}")
    e(f"ds_write_b32 {V(vT+4)}, {l2}")
    e.wait(vm="Q0")
    load_v(vsched[2])
    scores(0)
    load_v(vsched[3])
    edge_bias(1)
    call("F_sm0", lambda: softmax(0))
    stamp()
    e.wait(vm="Q1")
    load_v(vsched[4])
    scores(1)
    load_v(vsched[5])
    call("F_sm1", lambda: softmax(1))
    load_v(vsched[6])
    stamp()
    e.wait(lg="all")
    e("s_barrier")
    e(f"ds_read_b128 {V(vT+4,4)}, {V(vMX)}", tag="mx")
    load_v(vsched[7])
    e.wait(lg="all")
    e(f"v_max3_f32 {m}, {V(vT+4)}, {V(vT+5)}, {V(vT+6)}")
    e(f"v_max_f32 {m}, {m}, {V(vT+7)}")
    e(f"v_mul_f32 {V(vT+8)}, s49, {m}")
    for k in range(16):
        e(f"v_fma_f32 {SG(k)}, {SG(k)}, s49, -{V(vT+8)}")
    for k in range(16):
        e(f"v_exp_f32 {SG(k)}, {SG(k)}")
    e(f"v_add_f32 {l}, {SG(0)}, {SG(1)}")
    for k in range(2, 16):
        e(f"v_add_f32 {l}, {l}, {SG(k)}")
    for k in range(8):
        e(f"v_cvt_pk_bf16_f32 {QG(k)}, {SG(2*k)}, {SG(2*k+1)}")
    run(xlane_ops(l, "v_add_f32"))
    e(f"ds_write_b128 {V(vPW)}, {QG(0,4)} offset:6144")
    e(f"ds_write_b128 {V(vPW)}, {QG(4,4)} offset:7168")
    e(f"ds_write_b32 {V(vT+11)}, {l} offset:256")
    vcap = vcap2
    load_v(15)
    if not q2in:
        load_q(2)
    edge_bias(2)
    e("s_mov_b32 s56, 0")
    e("s_mov_b32 s61, 0")
    stamp()
    e.wait(vm="V01", lg="all")
    e("s_barrier")
    e(f"ds_read_b128 {PG(0,4)}, {V(vPR)} offset:0", tag="pg")
    run(job_reads(0))
    for ks in range(1, 8):
        e(f"ds_read_b128 {PG(4*ks,4)}, {V(vPR)} offset:{(ks//2)*SCRB + (ks%2)*1024}", tag="pg")
    e(f"ds_read_b128 {V(vT+4,4)}, {V(vMX)} offset:256", tag="lx")
    for j in range(1, D):
        run(job_reads(j))
    for j in range(8):
        valu = []
        if j == 4:
            valu = [T(f"v_add_f32 {V(vT+9)}, {V(vT+4)}, {V(vT+5)}"), T(f"v_add_f32 {V(vT+9)}, {V(vT+9)}, {V(vT+6)}"),
                    T(f"v_add_f32 {V(vT+9)}, {V(vT+9)}, {V(vT+7)}")]
        do_job(j, 8 + D - 2, [], valu)
    entry_lg = [t for t in e.lg if t in ("j8", "j9", "j10")]
    e.lg[:] = entry_lg
    call("F_pv", pv_pair)
    stamp()
    if probe:
        e("s_getreg_b32 s96, hwreg(HW_REG_IB_STS)")
    for j in (20, 21, 22):
        run(job_reads(j))
    q3 = load_q_ops(3) if q3pos == 2 else []
    run(q3)
    for j in (20, 21, 22):
        e.wait(lg=f"j{j}")
        run(job_mfmas(j))
    stamp()
    if probe:
        e("s_getreg_b32 s97, hwreg(HW_REG_IB_STS)")
    e("s_mov_b32 s57, s42")
    held = [o for c in range(3) for o in store_ops(c, True)]
    if imajor:
        held = [held[4 * c + i] for i in range(4) for c in range(3)]
    cuts = [sum(pace[:k]) for k in range(len(pace) + 1)]
    hs = lambda k: held[cuts[k]:cuts[k+1]]
    assert cuts[-1] == 12
    e.wait(vm="Q2")
    parts = [T(f"buffer_store_dwordx2 {V(vT+8,2)}, {V(vML)}, {SW}, 0 offen sc1", "part")]
    parts += [T(f"buffer_store_dwordx4 {OG(4*i,4)}, {V(vWS)}, {SW}, 0 offen offset:{256*i} sc1", "part") for i in range(3)]
    scores(2, parts + hs(0) + hs(1))
    run(hs(2))
    stamp()
    if probe:
        e("s_getreg_b32 s98, hwreg(HW_REG_IB_STS)")
    fstamp()
    edge_bias(3)
    call("F_sm0", lambda: softmax(0))
    stamp()
    fstamp()
    e.wait(vm=["Q3", "part"])
    if lite == "r":
        seq[0] = 200; stamp(); seq[0] = 9
    e(f"v_mov_b32 {V(vT+5)}, 1")
    e(f"v_mov_b32 {V(vT+4)}, {XCH+512}")
    e("s_mov_b64 exec, 1")
    e(f"ds_add_rtn_u32 {V(vPR)}, {V(vT+4)}, {V(vT+5)}", tag="cnt")
    e("s_mov_b64 exec, -1")
    for b in range(4):
        e(f"v_add_u32 {V(vVR+b)}, {2*TILEB}, {V(vVR+b)}")
    e.wait(lg="all")
    e(f"v_readfirstlane_b32 s61, {V(vPR)}")
    e("s_cmp_lg_u32 s61, 3")
    e("s_cbranch_scc1 L_nosig")
    e("s_lshl_b32 s44, s40, 2")
    e(f"v_mov_b32 {V(vT+4)}, s44")
    e(f"v_mov_b32 {V(vPW)}, 1")
    e("s_mov_b64 exec, 1")
    sv = list(e.vm)
    e(f"buffer_atomic_add {V(vPW)}, {V(vT+4)}, {SD}, 0 offen sc0", tag="atom")
    e.vm[:] = sv + ["sigmark"]
    e("s_mov_b64 exec, -1")
    e.label("L_nosig")
    run(hs(3))
    pre = [o for j in range(8, 8 + D - 1) for o in job_reads(j)]
    mix = list(pre)
    for k, o in enumerate(hs(4)):
        mix.insert((len(pre) * (2 * k + 1)) // (2 * len(hs(4))) + k, o)
    scores(3, mix)
    run(hs(5))
    stamp()
    fstamp()
    if not nob3:
        call("F_sm1", lambda: softmax(1))
    run(hs(6))
    if wb:
        if wb == "w0":
            e("s_cmp_lg_u32 s3, 0")
            e("s_cbranch_scc1 L_nowb")
        e("buffer_wbl2 sc1")
        if wb == "w0":
            e.label("L_nowb")
    stamp()
    fstamp()
    if chk < 0:
        check_arrival(e, CB, W, SW, vL, vT, len(e.vm) - 1 - e.vm.index("sigmark"))
    e("s_mov_b32 s56, 1")
    e(f"s_add_i32 s57, s42, {2*TILEB}")
    assert e.lg == entry_lg, (e.lg, entry_lg)
    call("F_pv", pv_pair)
    stamp()
    fstamp()
    fstamp(True)
    e("s_cmp_lg_u32 s61, 7")
    e("s_cbranch_scc1 L_fin")
    e("s_waitcnt vmcnt(12)")
    e(f"v_max3_f32 {m}, {W(0)}, {W(2)}, {W(4)}")
    e(f"v_max3_f32 {m}, {m}, {W(6)}, {W(8)}")
    e(f"v_max3_f32 {m}, {m}, {W(10)}, {W(12)}")
    e(f"v_max_f32 {m}, {m}, {W(14)}")
    for s in range(8):
        e(f"v_sub_f32 {W(2*s)}, {W(2*s)}, {m}")
    for s in range(8):
        e(f"v_exp_f32 {W(2*s)}, {W(2*s)}")
    e(f"v_mul_f32 {l}, {W(0)}, {W(1)}")
    for s in range(1, 8):
        e(f"v_fmac_f32 {l}, {W(2*s)}, {W(2*s+1)}")
    e(f"v_rcp_f32 {l}, {l}")
    X = R("v", 120)
    for s in range(8):
        for k in range(6):
            if s == 0:
                e(f"v_mul_f32 {X(k)}, {W(0)}, {CB(k)}")
            else:
                e(f"v_fmac_f32 {X(k)}, {W(2*s)}, {CB(6*s+k)}")
    for k in range(6):
        e(f"v_mul_f32 {X(k)}, {X(k)}, {l}")
    for k in range(3):
        e(f"v_cvt_pk_bf16_f32 {X(k)}, {X(2*k)}, {X(2*k+1)}")
    e(f"v_mul_u32_u24 {tmp}, 12, {V(vL)}")
    e(f"buffer_store_dwordx3 {X(0,3)}, {tmp}, {SO}, 0 offen {sf}")
    e.label("L_fin")
    if stamps:
        e("s_waitcnt vmcnt(0)")
        stamp()
        e("s_load_dwordx2 s[20:21], s[0:1], 56")
        e("s_waitcnt lgkmcnt(0)")
        e("s_mov_b32 s22, 0x1000000")
        e("s_lshl_b32 s44, s2, 2")
        e("s_add_u32 s44, s44, s3")
        e("s_lshl_b32 s44, s44, 6")
        e("s_add_u32 s44, s44, 0x100000")
        e(f"v_mov_b32 {V(vT+1)}, 0")
        if probe:
            for k, reg in enumerate((96, 97, 98)):
                e(f"v_mov_b32 {V(vT)}, s{reg}")
                e(f"buffer_store_dword {V(vT)}, {V(vT+1)}, {SW}, s44 offen offset:{48+4*k}")
                e("s_nop 1")
        e(f"v_mov_b32 {V(vT)}, s61")
        e(f"buffer_store_dword {V(vT)}, {V(vT+1)}, {SW}, s44 offen offset:60")
        e("s_nop 1")
        for k in range(nst[0]):
            e(f"v_mov_b32 {V(vT)}, s{64+2*k}")
            e(f"buffer_store_dword {V(vT)}, {V(vT+1)}, {SW}, s44 offen offset:{4*k}")
            e("s_nop 1")
    if amp:
        e("s_waitcnt vmcnt(0)")
        e("s_memrealtime s[66:67]")
        e("s_waitcnt lgkmcnt(0)")
        e("s_sub_u32 s90, s66, s64")
        e("s_min_u32 s90, s90, 4000")
        e(f"s_mul_i32 s90, s90, {amp}")
        e("; AMPSPIN")
    if span:
        a, am, b, bm, Amp = span
        e("s_waitcnt vmcnt(0)")
        e("s_mov_b64 exec, 1")
        for slot, (k, md) in enumerate(((a, am), (b, bm))):
            src = f"s{64+2*k}"
            if md == "min":
                e(f"s_not_b32 s92, {src}"); src = "s92"
            e(f"v_mov_b32 v36, {src}")
            e(f"v_mov_b32 v37, {192 + 4*slot}")
            e(f"buffer_atomic_umax v36, v37, {SD}, 0 offen")
        e("s_waitcnt vmcnt(0)")
        e("v_mov_b32 v36, 1")
        e("v_mov_b32 v37, 188")
        e(f"buffer_atomic_add v36, v37, {SD}, 0 offen sc0")
        e("s_waitcnt vmcnt(0)")
        e("v_readfirstlane_b32 s92, v36")
        e("s_cmp_lg_u32 s92, 1023")
        e("s_cbranch_scc1 L_end")
        e("v_mov_b32 v38, 0")
        e("v_mov_b32 v39, 0")
        e("v_mov_b32 v37, 192")
        e(f"buffer_atomic_add v38, v37, {SD}, 0 offen sc0")
        e(f"buffer_atomic_add v39, v37, {SD}, 0 offen offset:4 sc0")
        e("s_waitcnt vmcnt(0)")
        e("v_readfirstlane_b32 s90, v38")
        e("v_readfirstlane_b32 s91, v39")
        if am == "min":
            e("s_not_b32 s90, s90")
        if bm == "min":
            e("s_not_b32 s91, s91")
        e("s_sub_u32 s90, s91, s90")
        e("s_min_u32 s90, s90, 4000")
        e(f"s_mul_i32 s90, s90, {Amp}")
        e("; AMPSPIN")
    e.label("L_end")
    e("s_endpgm")
    text = e.finish() + "L_codeend:\n    .fill 64, 4, 0xbf800000\n"
    if span or amp:
        text = text.replace("    ; AMPSPIN\n", """    s_memrealtime s[92:93]
    s_waitcnt lgkmcnt(0)
    s_add_u32 s90, s90, s92
L_spin:
    s_memrealtime s[92:93]
    s_waitcnt lgkmcnt(0)
    s_sub_u32 s91, s92, s90
    s_cmp_lt_i32 s91, 0
    s_cbranch_scc1 L_spin
""")
    if nostore:
        text = "\n".join(l for l in text.split("\n") if not (l.strip().startswith("buffer_store_dwordx4") and "s[16:19]" in l))
        text = text.replace("s_waitcnt vmcnt(12)", "s_waitcnt vmcnt(0)")
    if qlin:
        text = text.replace(", v14, s[4:7]", ", v248, s[4:7]").replace(", v15, s[4:7]", ", v250, s[4:7]")
        text = text.replace("    s_barrier\n", "    v_add_u32 v250, 3072, v248\n    s_barrier\n", 1).replace("    s_waitcnt lgkmcnt(0)\n", "    s_waitcnt lgkmcnt(0)\n    v_add_u32 v250, 3072, v248\n", 1)
    if strip:
        drop = ("v_mfma", "ds_read_b64_tr", "ds_write_b64", "v_exp", "v_fma_f32", "v_max3", "v_cvt", "v_mul_f32", "v_add_f32",
                "v_mov_b32_dpp", "v_permlane", "v_max_f32", "v_rcp") + (("ds_read_b128",) if strip == 2 else ())
        text = "\n".join(l for l in text.split("\n") if not l.strip().startswith(drop))
    full = HEADER.format(lds=LDS_TOTAL, kn=KN) + text + FOOTER.format(kn=KN, nsgpr=100 if probe else 96)
    if pf:
        full = full.replace("CODE_LAST", str(code_size(full.replace("CODE_LAST", "0x1234"), KN) - 128))
    return full


def check_arrival(e, CB, W, SW, vL, vT, cnt):
    e("s_cmp_lg_u32 s61, 3")
    e("s_cbranch_scc1 L_notlast")
    e(f"s_waitcnt vmcnt({cnt})")
    e("v_readfirstlane_b32 s61, v28")
    e("s_cmp_lg_u32 s61, 7")
    e("s_cbranch_scc1 L_notlast")
    sv = list(e.vm)
    e(f"v_lshrrev_b32 {V(vT+4)}, 5, {V(vL)}")
    e(f"v_and_b32 {V(vT+5)}, 31, {V(vL)}")
    e(f"v_mul_u32_u24 {V(vT+5)}, 24, {V(vT+5)}")
    e(f"v_mul_u32_u24 {V(vT+6)}, 768, {V(vT+4)}")
    e(f"v_add_u32 {V(vT+5)}, {V(vT+5)}, {V(vT+6)}")
    e(f"v_lshlrev_b32 {V(vT+4)}, 6, {V(vT+4)}")
    e("s_mov_b32 s50, 12288")
    for k in range(4):
        e(f"buffer_load_dwordx4 {W(4*k,4)}, {V(vT+4)}, {SW}, s50 offen offset:{16*k} sc1")
    for s in range(8):
        e(f"s_mov_b32 s50, {s*1536}")
        e(f"buffer_load_dwordx4 {CB(6*s,4)}, {V(vT+5)}, {SW}, s50 offen sc1")
        e(f"buffer_load_dwordx2 {CB(6*s+4,2)}, {V(vT+5)}, {SW}, s50 offen offset:16 sc1")
    e.vm[:] = sv
    e.label("L_notlast")


if __name__ == "__main__":
    import ast
    out = sys.argv[1]
    kw = {}
    for a in sys.argv[2:]:
        k, v = a.split("=", 1)
        try:
            kw[k] = ast.literal_eval(v)
        except Exception:
            kw[k] = v
    open(out, "w").write(gen(**kw))
```

```python
import sys, struct
from asmdsl import Asm, code_size

KN = "standalone__global_local_windowed_global_tokens__prompt_kernel"
HEADB = 786432
TILEB = 6144
VIMG = 320 * 384
SCRB = 9216
XCH = VIMG + 4 * SCRB
LDS_TOTAL = XCH + 1024
SCALE = 192 ** -0.5 * 1.4426950408889634
BIG = 0xF1000000


def f2u(x):
    return struct.unpack("<I", struct.pack("<f", x))[0]


HEADER = """; Kernarg layout (64 bytes, pointers only, base s[0:1]):
;
; @launch grid=(256,1,1) block=(256,1,1) lds={lds}
.amdgcn_target "amdgcn-amd-amdhsa--gfx950"
.text
.globl {kn}
.p2align 8
.type {kn},@function
{kn}:
"""
FOOTER = """
.section .rodata,"a"
.p2align 6
.amdhsa_kernel {kn}
  .amdhsa_next_free_vgpr 512
  .amdhsa_next_free_sgpr {nsgpr}
  .amdhsa_accum_offset 256
  .amdhsa_group_segment_fixed_size 0
  .amdhsa_kernarg_size 64
  .amdhsa_user_sgpr_count 2
  .amdhsa_user_sgpr_kernarg_segment_ptr 1
  .amdhsa_system_sgpr_workgroup_id_x 1
  .amdhsa_float_denorm_mode_32 3
.end_amdhsa_kernel
"""


def V(i, n=1):
    return f"v{i}" if n == 1 else f"v[{i}:{i+n-1}]"


def A(i, n=1):
    return f"a{i}" if n == 1 else f"a[{i}:{i+n-1}]"


class R:
    def __init__(self, f, b):
        self.f, self.b = f, b

    def __call__(self, off=0, n=1):
        i = self.b + off
        return f"{self.f}{i}" if n == 1 else f"{self.f}[{i}:{i+n-1}]"


def gen(lf="nt", sf="sc1", stamps=False, gf="", pf=True, qf=None, vf=None, pfall=False, r128=True, nv0=4, chk=3, vcap2=None, imajor=True, strip=None, nohalo=False, sf0=None, wb=None, vsched=(1, 1, 1, 1, 1, 1, 1, 1), subs=True, fine=False, pace=(0, 0, 0, 0, 0, 6, 6), sync=5, q3pos=0, q2in=True, kcap=8, vcap=None, q1late=False, probe=False, gearly=True, khalf=False, lite=(2, 6, 9, 12, 13), q3split=0, pf1=True, pfpos=0, zedge=True, kcapE=None, nostore=False, qlin=False, gorder=None, shf=None, hf=None, kcap0=None, nk0=5, gpos=3, span=None, nob3=False, amp=None, early=False, wide=True, setup_first=False, qmode=0, sf2=None, n2=1):
    e = Asm()
    qf = lf if qf is None else qf
    vf = lf if vf is None else vf
    sf0 = sf if sf0 is None else sf0
    SQ, SK, SV, SO, SW, SD = "s[4:7]", "s[8:11]", "s[12:15]", "s[16:19]", "s[20:23]", "s[24:27]"
    vL, vLin, vKA, vLow = 0, 1, 2, 3
    vCW, vCR, vOW, vOR, vQA, vQB, vVR, vVG = 4, 7, 9, 13, 14, 15, 16, 20
    vVD, vGR, vGV, vPW, vPR, vMX, vWS, vML = 21, 24, 25, 28, 29, 30, 31, 32
    vJ, vG4, vBig = 33, 34, 35
    vT = 36
    vST, vSTM = 248, 249
    TRI = [V(4), V(5), V(6), V(190)]
    B = R("v", 48)
    Ss = [R("v", 72), R("v", 96)]
    Ps = [R("v", 120), R("v", 132)]
    O = R("v", 144)
    Kt = [R("a", 24 * u) for u in range(8)]
    KG = R("a", 192)
    Qt = [R("v", 192), R("v", 220), R("v", 192), R("v", 220)]
    Fb = [R("v", 176), R("a", 216), R("a", 230), R("a", 0)]
    D = len(Fb)
    QG = R("v", 144); SG = R("v", 168)
    PG = R("v", 72); OG = R("v", 104)
    m, tmp, l, l2 = V(vT), V(vT + 1), V(vT + 2), V(vT + 3)
    nst = [0]

    def fstamp(real=False):
        if fine:
            k = nst[0]
            e(f"{'s_memrealtime' if real else 's_memtime'} s[{64+2*k}:{65+2*k}]")
            e("s_waitcnt lgkmcnt(0)")
            nst[0] += 1

    seq = [0]

    def stamp():
        seq[0] += 1
        if stamps == "lite" and seq[0] not in ((1, 101, 102, 2, 6, 13) if lite == "k" else (6, 8, 201, 12, 13) if lite == "r" else (9, 301, 302, 12, 13) if lite == "q" else lite):
            return
        if stamps and not fine:
            k = nst[0]
            e(f"s_memrealtime s[{64+2*k}:{65+2*k}]")
            e("s_waitcnt lgkmcnt(0)")
            nst[0] += 1

    def T(text, tag=None):
        return lambda: e(text, tag=tag)

    def run(ops):
        for o in ops:
            o()

    def call(name, fn):
        if subs:
            e.call(name, fn)
        else:
            fn()

    e("s_cmpk_ge_u32 s2, 256")
    e("s_cbranch_scc1 L_end")
    if wide:
        e("s_load_dwordx16 s[76:91], s[0:1], 0")
    else:
        e("s_load_dwordx2 s[8:9], s[0:1], 8")
    if stamps or amp:
        e("s_memrealtime s[64:65]")
        nst[0] = 1
    e("v_lshrrev_b32 v1, 6, v0")
    e(f"v_and_b32 {V(vL)}, 63, v0")
    e("v_readfirstlane_b32 s3, v1")
    e(f"v_lshrrev_b32 {V(vT)}, 3, {V(vL)}")
    e(f"v_and_b32 {V(vT+1)}, 7, {V(vL)}")
    e(f"v_xor_b32 {V(vT+2)}, {V(vT)}, {V(vT+1)}")
    e(f"v_mul_u32_u24 {V(vT)}, 384, {V(vT)}")
    e(f"v_lshl_add_u32 {V(vKA)}, {V(vT+2)}, 4, {V(vT)}")
    e("s_and_b32 s40, s2, 7")
    e("s_lshr_b32 s44, s2, 6")
    e("s_lshl2_add_u32 s40, s40, s44")
    e("s_lshr_b32 s41, s2, 3")
    e("s_and_b32 s41, s41, 7")
    e(f"s_mul_i32 s45, s40, {HEADB}")
    e("s_lshl_b32 s46, s41, 5")
    e("s_add_u32 s46, s46, s3")
    e("s_sub_i32 s46, s46, 4")
    e("s_mulk_i32 s46, 3072")
    e("s_mul_i32 s47, s3, 3072")
    e("s_mov_b32 s11, 0x20000")
    e("s_movk_i32 s51, 896")

    def late_setup():
        if not wide:
            e("s_load_dwordx2 s[4:5], s[0:1], 0")
            e("s_load_dwordx2 s[12:13], s[0:1], 16")
            e("s_load_dwordx2 s[16:17], s[0:1], 40")
            e("s_load_dwordx2 s[24:25], s[0:1], 48")
            e("s_load_dwordx2 s[20:21], s[0:1], 56")
        e(f"v_lshl_add_u32 {V(vST)}, {V(vT+1)}, 4, {V(vT)}")
        e(f"v_lshlrev_b32 {V(vLin)}, 4, {V(vL)}")
        e("s_lshl2_add_u32 s60, s41, s3")
        e(f"s_mul_i32 s42, s60, {4*TILEB}")
        e("s_lshl_b32 s60, s60, 6")
        e(f"s_mul_i32 s43, s3, {SCRB}")
        e(f"s_add_u32 s43, s43, {VIMG}")
        e(f"s_mov_b32 s6, {HEADB}")
        e("s_mov_b32 s7, 0x20000")
        e(f"s_mov_b32 s14, {HEADB}")
        e("s_mov_b32 s15, 0x20000")

    def late_setup2():
        if wide:
            for b, a in ((4, 76), (12, 80)):
                e(f"s_add_u32 s{b}, s{a}, s45")
                e(f"s_addc_u32 s{b+1}, s{a+1}, 0")
            e("s_mov_b64 s[16:17], s[86:87]")
            e("s_mov_b64 s[24:25], s[88:89]")
            e("s_mov_b64 s[20:21], s[90:91]")
            return
        e("s_waitcnt lgkmcnt(0)")
        for b in (4, 12):
            e(f"s_add_u32 s{b}, s{b}, s45")
            e(f"s_addc_u32 s{b+1}, s{b+1}, 0")

    def prefetch_code():
        if not pf:
            return
        if pf1:
            e("s_getpc_b64 s[62:63]")
            e("s_lshr_b32 s50, s2, 3")
            e("s_lshl2_add_u32 s50, s50, s3")
            e("s_lshl_b32 s50, s50, 7")
            e("s_min_u32 s50, s50, CODE_LAST")
            e("v_mov_b32 v46, s50")
            sv = list(e.vm)
            e("global_load_dword v47, v46, s[62:63]")
            e.vm[:] = sv
            return
        if not pfall:
            e("s_cmp_ge_u32 s2, 16")
            e("s_cbranch_scc1 L_nopf")
        e("v_min_u32 v46, CODE_LAST, v46")
        sv = list(e.vm)
        e("global_load_dword v47, v46, s[62:63]")
        e.vm[:] = sv
        if not pfall:
            e.label("L_nopf")

    def load_g():
        for off, srd in ((6144, SK), (7168, SQ), (8192, SV)):
            e(f"s_add_u32 m0, s43, {off}")
            e.cap(kcap)
            e(f"buffer_load_dwordx4 {V(vLin)}, {srd}, 0 offen {gf} lds", tag="g")

    def load_q_ops(t):
        e(f"s_add_i32 s44, s42, {t*TILEB}")
        ops = []
        for L in range(3):
            ops.append(T(f"buffer_load_dwordx4 {Qt[t](8*L,4)}, {V(vQA)}, {SQ}, s44 offen offset:{128*L} {qf}", f"Q{t}"))
            ops.append(T(f"buffer_load_dwordx4 {Qt[t](8*L+4,4)}, {V(vQB)}, {SQ}, s44 offen offset:{128*L} {qf}", f"Q{t}"))
        return ops

    def load_q(t, cap=None):
        for o in load_q_ops(t):
            e.cap(cap)
            o()

    groups = list(gorder) if gorder else [0, 32, 4, 36, 8, 12, 16, 20, 24, 28]
    vnext = [0]
    first_k = [True]

    def load_group(g, va, srd, fl, tag, cols=(0, 1, 2)):
        if nohalo and g in (0, 36):
            return
        e(f"s_add_u32 m0, s47, {g*3072 + 896*cols[0]}")
        e(f"s_add_i32 s44, s46, {g*3072}")
        if g < 4:
            e("s_max_i32 s44, s44, 0")
        if g > 32:
            e(f"s_min_i32 s44, s44, {2040*384}")
        if shf is not None and g in (4, 32):
            fl = shf
        if hf is not None and g in (0, 36):
            fl = hf
        nrec = {SK: "s10", SV: "s14"}[srd]
        if zedge and g in (0, 36):
            e(f"s_cmp_eq_u32 s41, {0 if g == 0 else 7}")
            e(f"s_cselect_b32 {nrec}, 0, {HEADB}")
        if first_k[0]:
            first_k[0] = False
            e("s_waitcnt lgkmcnt(0)")
            e(f"s_add_u32 s8, s{78 if wide else 8}, s45")
            e(f"s_addc_u32 s9, s{79 if wide else 9}, 0")
        for mm in cols:
            if mm != cols[0]:
                e("s_add_u32 m0, m0, s51")
            e.cap(kcap if tag == "K" else vcap)
            e(f"buffer_load_dwordx4 {V(va)}, {srd}, s44 offen offset:{128*mm} {fl} lds", tag=tag)
        if zedge and g in (0, 36):
            e(f"s_mov_b32 {nrec}, {HEADB}")

    def load_v(n=1):
        for _ in range(n):
            k = vnext[0]
            if k >= 15:
                return
            if k < 10:
                load_group(([8, 12, 24, 28, 0, 32, 4, 36, 16, 20] if khalf else groups)[k], vVD, SV, vf, "V01", (0, 1))
            else:
                for g in groups[2*(k-10):2*(k-10)+2]:
                    load_group(g, vVD, SV, vf, "V2", (2,))
            vnext[0] += 1

    def consts_early():
        j, g, t0, t1 = vJ, vT, vT + 1, vT + 2
        e(f"v_and_b32 {V(j)}, 15, {V(vL)}")
        e(f"v_lshrrev_b32 {V(g)}, 4, {V(vL)}")
        e(f"v_and_b32 {V(t0)}, 7, {V(j)}")
        e(f"v_mul_u32_u24 {V(t0)}, 384, {V(t0)}")
        e(f"v_lshl_add_u32 {V(t0)}, {V(g)}, 4, {V(t0)}")
        e(f"v_and_b32 {V(vQB)}, 8, {V(j)}")
        e(f"v_lshl_add_u32 {V(vQA)}, {V(vQB)}, 3, {V(t0)}")
        e(f"v_xor_b32 {V(vQB)}, 64, {V(vQA)}")
        e(f"v_add_u32 {V(vQB)}, 3072, {V(vQB)}")
        e(f"v_lshrrev_b32 {V(t0)}, 3, {V(vL)}")
        e(f"v_and_b32 {V(t0)}, 6, {V(t0)}")
        e(f"v_lshlrev_b32 {V(t0)}, 4, {V(t0)}")
        e(f"v_xor_b32 {V(vVD)}, {V(t0)}, {V(vST)}")
        e(f"v_lshrrev_b32 {V(t0)}, 3, {V(j)}")
        e(f"v_mul_u32_u24 {V(t1)}, 3072, {V(t0)}")
        e(f"v_and_b32 {V(t0)}, 7, {V(j)}")
        e(f"v_lshl_add_u32 {V(t1)}, {V(t0)}, 7, {V(t1)}")
        e(f"v_xor_b32 {V(t0)}, {V(t0)}, {V(g)}")
        e(f"v_lshl_add_u32 {V(t1)}, {V(t0)}, 4, {V(t1)}")
        e(f"s_mul_i32 s50, s3, {4*TILEB}")
        e(f"v_add_u32 {V(vCR)}, s50, {V(t1)}")
        e(f"v_xor_b32 {V(vCR+1)}, 64, {V(vCR)}")
        e(f"v_and_b32 {V(t0)}, 1, {V(j)}")
        e(f"v_mul_u32_u24 {V(t0)}, 384, {V(t0)}")
        e(f"v_lshl_add_u32 {V(t0)}, {V(g)}, 4, {V(t0)}")
        e(f"v_add_u32 {V(vGR)}, s43, {V(t0)}")

    def consts_rest():
        j, g, t0, t1, t2 = vJ, vT, vT + 1, vT + 2, vT + 3
        e(f"v_lshrrev_b32 {V(g)}, 4, {V(vL)}")
        e(f"v_lshlrev_b32 {V(vG4)}, 2, {V(g)}")
        e(f"v_mov_b32 {V(vBig)}, {BIG:#x}")
        e(f"v_lshlrev_b32 {V(t1)}, 7, {V(j)}")
        e(f"v_and_b32 {V(t0)}, 1, {V(g)}")
        e(f"v_lshl_add_u32 {V(t1)}, {V(t0)}, 3, {V(t1)}")
        e(f"v_add_u32 {V(t1)}, s43, {V(t1)}")
        e(f"v_lshrrev_b32 {V(t2)}, 1, {V(g)}")
        e(f"v_and_b32 {V(t0)}, 7, {V(j)}")
        e(f"v_xor_b32 {V(t2)}, {V(t2)}, {V(t0)}")
        for b in range(4):
            e(f"v_xor_b32 {V(t0)}, {2*b}, {V(t2)}")
            e(f"v_lshl_add_u32 {V(vOW+b)}, {V(t0)}, 4, {V(t1)}")
        e(f"v_lshrrev_b32 {V(t0)}, 3, {V(vL)}")
        e(f"v_and_b32 {V(t1)}, 7, {V(vL)}")
        e(f"v_xor_b32 {V(t2)}, {V(t0)}, {V(t1)}")
        e(f"v_lshlrev_b32 {V(t2)}, 4, {V(t2)}")
        e(f"v_lshl_add_u32 {V(t2)}, {V(t0)}, 7, {V(t2)}")
        e(f"v_add_u32 {V(vOR)}, s43, {V(t2)}")
        if not r128:
            e(f"v_mul_u32_u24 {V(t0)}, 384, {V(t0)}")
            e(f"v_lshl_add_u32 {V(vST)}, {V(t1)}, 4, {V(t0)}")
        e(f"v_and_b32 {V(t2)}, 3, {V(vL)}")
        if r128:
            e(f"v_bfe_u32 {V(t0)}, {V(vL)}, 2, 3")
            e(f"v_lshlrev_b32 {V(t1)}, 7, {V(t0)}")
            e(f"v_lshrrev_b32 {V(t0)}, 5, {V(vL)}")
            e(f"v_mul_u32_u24 {V(t0)}, 3072, {V(t0)}")
            e(f"v_add_u32 {V(t1)}, {V(t1)}, {V(t0)}")
        else:
            e(f"v_lshrrev_b32 {V(t0)}, 2, {V(vL)}")
            e(f"v_mul_u32_u24 {V(t1)}, 384, {V(t0)}")
        e(f"v_lshl_add_u32 {V(t1)}, {V(t2)}, 3, {V(t1)}")
        e(f"v_bfe_u32 {V(vT+4)}, {V(vL)}, 3, 2")
        e(f"s_mul_i32 s44, s3, {4*TILEB}")
        for b in range(4):
            e(f"v_xor_b32 {V(t0)}, {b}, {V(vT+4)}")
            e(f"v_lshl_add_u32 {V(t0)}, {V(t0)}, 5, {V(t1)}")
            e(f"v_add_u32 {V(vVR+b)}, s44, {V(t0)}")
        e(f"v_xor_b32 {V(t0)}, s3, {V(vT+4)}")
        e(f"v_lshl_add_u32 {V(t0)}, {V(t0)}, 5, {V(t1)}")
        e(f"v_add_u32 {V(vGV)}, {2*TILEB}, {V(t0)}")
        e(f"v_add_u32 {V(vGV+1)}, {10*TILEB}, {V(t0)}")
        e(f"v_bfe_u32 {V(t0)}, {V(vL)}, 2, 1")
        e(f"v_mul_u32_u24 {V(t0)}, 384, {V(t0)}")
        e(f"v_lshl_add_u32 {V(t0)}, {V(t2)}, 3, {V(t0)}")
        e(f"v_add_u32 {V(vVG)}, s43, {V(t0)}")
        e(f"v_add_u32 {V(vPW)}, s43, {V(vLin)}")
        e(f"v_add_u32 {V(vPR)}, {VIMG + 6144}, {V(vLin)}")
        e(f"v_lshlrev_b32 {V(t0)}, 4, {V(j)}")
        e(f"v_add_u32 {V(vMX)}, {XCH}, {V(t0)}")
        e("s_mul_i32 s44, s41, 1536")
        e("s_lshl_b32 s50, s3, 6")
        e("s_add_u32 s44, s44, s50")
        e(f"v_cmp_gt_u32 vcc, 2, {V(j)}")
        e(f"v_mul_u32_u24 {V(t0)}, 768, {V(j)}")
        e(f"v_lshl_add_u32 {V(t0)}, {V(g)}, 4, {V(t0)}")
        e(f"v_add_u32 {V(t0)}, s44, {V(t0)}")
        e(f"v_cndmask_b32 {V(vWS)}, {V(vBig)}, {V(t0)}, vcc")
        e("s_cmp_eq_u32 s3, 0")
        e("s_cselect_b32 s50, 2, 0")
        e(f"v_cmp_gt_u32 vcc, s50, {V(vL)}")
        e("s_lshl_b32 s44, s41, 3")
        e("s_add_u32 s44, s44, 12288")
        e(f"v_lshlrev_b32 {V(t0)}, 6, {V(j)}")
        e(f"v_add_u32 {V(t0)}, s44, {V(t0)}")
        e(f"v_cndmask_b32 {V(vML)}, {V(vBig)}, {V(t0)}, vcc")
        e("s_cmp_eq_u32 s60, 0")
        e("s_cselect_b32 s44, 16, 0")
        e(f"v_cmp_gt_u32 vcc, s44, {V(vL)}")
        e(f"s_mov_b32 s49, {f2u(SCALE):#x}")
        e("s_add_u32 s16, s16, s45")
        e("s_addc_u32 s17, s17, 0")
        e(f"v_cndmask_b32 {V(vSTM)}, {V(vST)}, {V(vBig)}, vcc")
        e(f"v_cmp_gt_u32 vcc, 16, {V(vL)}")
        e(f"s_mov_b32 s18, {HEADB}")
        e("s_mov_b32 s19, 0x20000")
        e(f"v_cndmask_b32 {B(20)}, {V(vBig)}, 0, vcc")
        e(f"v_cndmask_b32 {V(vLow)}, 0, {V(vBig)}, vcc")
        e(f"v_mov_b32 {B(22)}, {V(vBig)}")
        e(f"v_mov_b32 {B(21)}, {B(20)}")
        e(f"v_mov_b32 {B(23)}, {V(vBig)}")
        for r in range(4):
            e(f"v_add_u32 {V(vT+4+r)}, {r}, {V(vG4)}")
        for r in range(4):
            e(f"v_cmp_lt_u32 s[{52+2*r}:{53+2*r}], {V(vT+4+r)}, {V(j)}")
        for r in range(4):
            e(f"v_cndmask_b32 {B(r)}, 0, {V(vBig)}, s[{52+2*r}:{53+2*r}]")
        for r in range(4):
            e(f"v_cmp_gt_u32 s[{52+2*r}:{53+2*r}], {V(vT+4+r)}, {V(j)}")
        for r in range(4):
            e(f"v_cndmask_b32 {B(16+r)}, 0, {V(vBig)}, s[{52+2*r}:{53+2*r}]")
        for k in range(4, 16):
            e(f"v_mov_b32 {B(k)}, 0")
        e("s_lshl_b32 s44, s40, 14")
        e("s_add_u32 s20, s20, s44")
        e("s_addc_u32 s21, s21, 0")
        e("s_mov_b32 s22, 16384")
        e("s_mov_b32 s23, 0x20000")
        e("s_mov_b32 s26, 256")
        e("s_mov_b32 s27, 0x20000")

    def edge_bias(t):
        big, low = V(vBig), V(vLow)
        left = {0: [(TRI[r], B(r)) for r in range(4)] + [(B(k), big) for k in range(8)] + [(B(8), low), (B(9), low)],
                1: [(B(4), low), (B(5), low), (B(6), "0"), (B(7), "0"), (B(8), "0"), (B(9), "0")],
                2: [(B(2), TRI[2]), (B(3), TRI[3]), (B(4), "0"), (B(5), "0")],
                3: [(B(0), TRI[0]), (B(1), TRI[1])]}[t]
        e("s_cmp_lg_u32 s60, 0")
        e(f"s_cbranch_scc1 L_noleft{t}")
        for d, s_ in left:
            e(f"v_mov_b32 {d}, {s_}")
        if t == 2:
            e(f"v_min_f32 {B(0)}, {TRI[0]}, {low}")
            e(f"v_min_f32 {B(1)}, {TRI[1]}, {low}")
        e.label(f"L_noleft{t}")
        if t >= 2:
            e("s_cmp_lg_u32 s60, 1984")
            e(f"s_cbranch_scc1 L_noright{t}")
            for r in range(4):
                e(f"v_mov_b32 {B((16 if t == 2 else 12) + r)}, {big}")
            e.label(f"L_noright{t}")

    def capture(fn):
        nonlocal e
        real = e
        e = Asm()
        fn()
        lines = [i.text for i in e.lines]
        e = real
        return lines

    def xlane_ops(x, op):
        ops = []
        for sw in ("v_permlane32_swap_b32", "v_permlane16_swap_b32"):
            ops += [T(f"v_mov_b32 {tmp}, {x}"), T(f"{sw} {x}, {tmp}"), T(f"{op} {x}, {x}, {tmp}")]
        return ops

    def weave(mf, mem, valu):
        n = len(mf); dm = dv = 0
        for i, mo in enumerate(mf):
            mo()
            um = (len(mem) * (i + 1) + n - 1) // n
            uv = (len(valu) * (i + 1) + n - 1) // n
            run(mem[dm:um]); run(valu[dv:uv]); dm, dv = um, uv

    def qfix_ops(t, L):
        Q = Qt[t]
        a, b, x = 8 * L, 8 * L + 4, (24 if L == 0 else 8 * L - 4)
        ops = [T(f"v_mov_b32_dpp {Q(x+k)}, {Q(b+k)} row_ror:8 row_mask:0xf bank_mask:0xf") for k in range(4)]
        ops += [T(f"v_mov_b32_dpp {Q(x+k)}, {Q(a+k)} row_ror:8 row_mask:0xf bank_mask:0x3") for k in range(4)]
        ops += [T(f"v_mov_b32_dpp {Q(a+k)}, {Q(b+k)} quad_perm:[0,1,2,3] row_mask:0xf bank_mask:0xc") for k in range(4)]
        return ops

    def scores(t, mem=()):
        S, Q = Ss[t & 1], Qt[t]
        qop = [Q(0, 4), Q(24, 4), Q(8, 4), Q(4, 4), Q(16, 4), Q(12, 4)]
        mem = list(mem)
        run(qfix_ops(t, 0))
        for L in range(3):
            mf = []
            for s in (2 * L, 2 * L + 1):
                for u in range(6):
                    a_op = Kt[t + u](4*s, 4) if u < 5 else KG(4*s, 4)
                    c = B(4*u, 4) if s == 0 else S(4*u, 4)
                    mf.append(T(f"v_mfma_f32_16x16x32_bf16 {S(4*u,4)}, {a_op}, {qop[s]}, {c}"))
            part = mem[(len(mem) * L) // 3:(len(mem) * (L + 1)) // 3]
            weave(mf, part, qfix_ops(t, L + 1) if L < 2 else [])

    def softmax(par):
        S, P = Ss[par], Ps[par]
        cut = 8 if par else 2
        pd = lambda k: P(cut) if k == 10 else (P(k) if k < cut else P(k + 2))
        e(f"v_mov_b32 {P(cut+1)}, 0")
        e(f"v_max3_f32 {m}, {S(0)}, {S(1)}, {S(2)}")
        e(f"v_max3_f32 {l}, {S(3)}, {S(4)}, {S(5)}")
        for k in range(6, 22, 4):
            e(f"v_max3_f32 {m}, {m}, {S(k)}, {S(k+1)}")
            e(f"v_max3_f32 {l}, {l}, {S(k+2)}, {S(k+3)}")
        e(f"v_max_f32 {m}, {m}, {l}")
        run(xlane_ops(m, "v_max_f32"))
        e(f"v_mul_f32 {m}, s49, {m}")
        for k in range(22):
            e(f"v_fma_f32 {S(k)}, {S(k)}, s49, -{m}")
        for k in range(22):
            e(f"v_exp_f32 {S(k)}, {S(k)}")
            if k == 3:
                e(f"v_add_f32 {l}, {S(0)}, {S(1)}")
            elif k == 5:
                e(f"v_add_f32 {l2}, {S(2)}, {S(3)}")
            elif k > 5:
                d = l if k % 2 == 0 else l2
                e(f"v_add_f32 {d}, {d}, {S(k-2)}")
        e(f"v_add_f32 {l}, {l}, {S(20)}")
        e(f"v_add_f32 {l2}, {l2}, {S(21)}")
        e(f"v_add_f32 {l}, {l}, {l2}")
        run(xlane_ops(l, "v_add_f32"))
        e(f"v_rcp_f32 {l}, {l}")
        for k in range(11):
            e(f"v_mul_f32 {S(2*k)}, {S(2*k)}, {l}")
            e(f"v_mul_f32 {S(2*k+1)}, {S(2*k+1)}, {l}")
            if k > 0:
                e(f"v_cvt_pk_bf16_f32 {pd(k-1)}, {S(2*k-2)}, {S(2*k-1)}")
        e(f"v_cvt_pk_bf16_f32 {pd(10)}, {S(20)}, {S(21)}")

    ASTEP = 1024 if r128 else 128

    def job_reads(j):
        F = Fb[j % D]
        ops = []
        tag = f"j{j}"
        if j < 8 or j >= 20:
            items = [(j, 0), (j, 1)] if j < 8 else [(ks, 2) for ks in range(3 * (j - 20), min(8, 3 * (j - 20) + 3))]
            for n, (ks, i) in enumerate(items):
                base = (ks % 4) * 2 * TILEB + 1024 * i
                ops.append(T(f"ds_read_b64_tr_b16 {F(4*n,2)}, {V(vGV + ks // 4)} offset:{base}", tag))
                ops.append(T(f"ds_read_b64_tr_b16 {F(4*n+2,2)}, {V(vGV + ks // 4)} offset:{base+TILEB}", tag))
        else:
            Tn = j - 8
            a, b = Tn >> 2, Tn & 3
            for u, slot in ((0, 0), (-1, 1), (1, 3), (2, 4), (3, 5), (4, 6), (5, 2)):
                if u >= 0:
                    ops.append(T(f"ds_read_b64_tr_b16 {F(2*slot,2)}, {V(vVR+b)} offset:{ASTEP*a + TILEB*u}", tag))
                else:
                    ops.append(T(f"ds_read_b64_tr_b16 {F(2*slot,2)}, {V(vVG)} offset:{8192+32*Tn}", tag))
        return ops

    def acc(Tn, odd):
        return R("v", O.b + 8 * (Tn % 4) + 4 * odd)

    def job_mfmas(j):
        F = Fb[j % D]
        if j < 8 or j >= 20:
            items = [(j, 0), (j, 1)] if j < 8 else [(ks, 2) for ks in range(3 * (j - 20), min(8, 3 * (j - 20) + 3))]
            return [T(f"v_mfma_f32_16x16x32_bf16 {OG(4*i,4)}, {F(4*n,4)}, {PG(4*ks,4)}, " + ("0" if ks == 0 else OG(4*i, 4)))
                    for n, (ks, i) in enumerate(items)]
        mf = []
        for ks in range(3):
            for odd in range(2):
                off = (0, 6, 10)[ks] if not odd else (6, 10, 2)[ks]
                d = acc(j - 8, odd)
                mf.append(T(f"v_mfma_f32_16x16x32_bf16 {d(0,4)}, {F(off,4)}, {Ps[odd](4*ks,4)}, " + ("0" if ks == 0 else d(0, 4))))
        return mf

    def cvt_ops(Tn):
        ops = []
        for odd in range(2):
            d = acc(Tn, odd)
            ops += [T(f"v_cvt_pk_bf16_f32 {d(0)}, {d(0)}, {d(1)}"), T(f"v_cvt_pk_bf16_f32 {d(1)}, {d(2)}, {d(3)}")]
        return ops

    def stage_ops(Tn):
        return [T(f"ds_write_b64 {V(vOW+(Tn&3))}, {acc(Tn, odd)(0,2)} offset:{2048*odd}", "ow") for odd in range(2)]

    quads = lambda r, n: [R(r.f, r.b + 4 * i) for i in range(n)]
    HB = [R("v", 252)] + quads(Kt[1], 6) + quads(R("a", 244), 3) + quads(R("a", 16), 2)

    def readback_ops(c):
        return [T(f"ds_read_b128 {HB[4*c+i](0,4)}, {V(vOR)} offset:{1024*i}", f"or{c}_{i}") for i in range(4)]

    def store_ops(c, first):
        ops = []
        for i in range(4):
            va = vSTM if (first and i == 0) else vST
            txt = f"buffer_store_dwordx4 {HB[4*c+i](0,4)}, {V(va)}, {SO}, s50 offen offset:{128*c} {sf0 if first else (sf2 if (sf2 is not None and c >= 3 - n2) else sf)}"
            ops.append(lambda i=i, txt=txt: (e(f"s_add_i32 s50, s57, {3072*i}"), e.wait(lg=f"or{c}_{i}"), e(txt, tag="O")))
        return ops

    def do_job(j, last, mem, valu):
        rd = job_reads(j - 1 + D) if (j >= 1 and j - 1 + D <= last) else []
        mm = []
        mem = list(mem)
        while rd or mem:
            if rd:
                mm.append(rd.pop(0))
            if mem:
                mm.append(mem.pop(0))
        e.wait(lg=f"j{j}")
        weave(job_mfmas(j), mm, list(valu))

    ncall = [0]
    CB = R("v", 192); W = R("v", 72)

    def pv_pair():
        def cond_store(c):
            sl, sv = list(e.lg), list(e.vm)
            lab = f"L_hold{c}" if subs else f"L_hold{c}_{ncall[0]}"
            e("s_cmp_eq_u32 s56, 0")
            e(f"s_cbranch_scc1 {lab}")
            run(store_ops(c, False))
            e.label(lab)
            e.lg[:] = sl
            if ncall[0] == 0:
                e.vm[:] = sv
        for Tn in range(12):
            if Tn == sync:
                sv = list(e.vm)
                lab = "L_nosync" if subs else f"L_nosync{ncall[0]}"
                e("s_cmp_lg_u32 s56, 0")
                e(f"s_cbranch_scc1 {lab}")
                if q2in and qmode == 0:
                    load_q(2)
                if q3pos == 0 and qmode != 1:
                    load_q(3)
                q3o = load_q_ops(3) if q3pos == 1 else []
                run(q3o[:q3split])
                e(f"s_waitcnt vmcnt({12 if q3pos == 0 else 6 + q3split})")
                e("s_barrier")
                run(q3o[q3split:])
                e.label(lab)
                if ncall[0] == 0:
                    nq = {0: 0 if q2in else 6, 1: 12, 2: 6}[qmode]
                    assert sv[-nq - 1] == "V2" and all(t[0] == "Q" for t in sv[len(sv) - nq:])
                    e.vm[:] = ["Q2"] * 6 + (["Q3"] * 6 if q3pos < 2 else [])
                else:
                    e.vm[:] = sv
            if Tn == chk:
                check_arrival(e, CB, W, SW, vL, vT, sum(pace[3:]))
            mem = stage_ops(Tn - 3) if Tn >= 3 else []
            if Tn in (6, 10):
                mem = mem + readback_ops((Tn - 6) // 4)
            do_job(8 + Tn, 19, mem, cvt_ops(Tn - 2) if Tn >= 2 else [])
            if Tn in (7, 11):
                cond_store((Tn - 7) // 4)
        run(stage_ops(9))
        run(cvt_ops(10)); run(cvt_ops(11))
        run(stage_ops(10)); run(stage_ops(11))
        run(readback_ops(2))
        cond_store(2)
        ncall[0] += 1

    def k_stream():
        nonlocal kcap
        kfin = kcap
        if pfpos == 0:
            prefetch_code()
        if setup_first:
            late_setup()
        cst = capture(consts_early) + [t.replace("s44", "s48") for t in capture(consts_rest)]
        cuts_c = [0, 0, 0] + [(len(cst) * k) // 8 for k in range(9)]
        for k, g in enumerate(groups):
            kcap = kcap0 if (kcap0 is not None and k < nk0) else kfin
            if early and k in (0, 1, 3, 5):
                e(f"s_memrealtime s[{64+2*nst[0]}:{65+2*nst[0]}]"); nst[0] += 1
            load_group(g, vKA, SK, lf, "K")
            if pfpos == k + 1:
                prefetch_code()
            if k == 1 and not setup_first:
                late_setup()
            if k == gpos:
                late_setup2()
                load_g()
            lo, hi = cuts_c[k], cuts_c[k + 1]
            while hi < len(cst) and hi > lo and cst[hi - 1].startswith(("s_cmp", "s_add_u32 s16", "s_add_u32 s20")):
                hi += 1
                cuts_c[k + 1] = hi
            for t in cst[lo:hi]:
                e(t)
        load_q(0, kcap)
        for t in cst[cuts_c[10]:]:
            e(t)
        if not q1late:
            load_q(1, kcap)

    if kcapE is None:
        k_stream()
    else:
        e("s_getreg_b32 s50, hwreg(HW_REG_XCC_ID, 0, 1)")
        e("s_cmp_eq_u32 s50, 0")
        e("s_cbranch_scc1 L_keven")
        sv = list(e.vm)
        k_stream()
        so = list(e.vm)
        e("s_branch L_kdone")
        e.label("L_keven")
        e.vm[:] = sv
        kcapO, kcap = kcap, kcapE
        k_stream()
        kcap = kcapO
        e.label("L_kdone")
        e.vm[:] = so if len(so) >= len(e.vm) else e.vm
    edge_bias(0)
    stamp()
    gq = [T(f"ds_read_b128 {QG(4*s,4)}, {V(vGR)} offset:{7168+64*s}", "qg") for s in range(6)]
    gk = [T(f"ds_read_b128 {KG(4*s,4)}, {V(vGR)} offset:{6144+64*s}", "kg") for s in range(6)]
    e.wait(vm="K")
    if gearly:
        run(gq + gk); gq = gk = []
    e("s_barrier")
    if lite == "k":
        seq[0] = 100; stamp()
    krd = lambda us: [T(f"ds_read_b128 {Kt[u](4*s,4)}, {V(vCR+(s&1))} offset:{u*TILEB + 1024*(s>>1)}", "kc") for u in us for s in range(6)]
    if not khalf:
        rds = gq + krd((2, 3, 4, 5, 0, 1, 6, 7)) + gk
        q1 = load_q_ops(1) if q1late else []
        for k, o in enumerate(rds):
            if k % 10 == 0 and q1:
                q1.pop(0)()
            o()
        e.wait(lg="all")
        e("s_barrier")
    else:
        e("s_bitcmp1_b32 s3, 0")
        e("s_cbranch_scc1 L_kodd")
        sl, sv = list(e.lg), list(e.vm)
        for par in (0, 1):
            if par:
                e("s_branch L_kjoin")
                e.label("L_kodd")
                e.lg[:] = sl; e.vm[:] = sv; vnext[0] = 0
            run(krd((4, 5, 6, 7) if par == 0 else (0, 1, 2, 3)))
            e.wait(lg="all")
            e("s_barrier")
            rds = krd((2, 3, 0, 1) if par == 0 else (4, 5, 6, 7))
            for k, o in enumerate(rds):
                if k % 6 == 0 and k // 6 < khalf:
                    load_v(1)
                o()
        e.label("L_kjoin")
        e.wait(lg="all")
        e("s_barrier")
    if lite == "k":
        stamp(); seq[0] = 1
    load_v(nv0)
    stamp()
    load_v(vsched[0])
    e.wait(lg="all")
    for s in range(6):
        for u in range(4):
            c = "0" if s == 0 else SG(4*u, 4)
            e(f"v_mfma_f32_16x16x32_bf16 {SG(4*u,4)}, {Kt[2+u](4*s,4)}, {QG(4*s,4)}, {c}")
    load_v(vsched[1])
    e(f"v_mov_b32 {l2}, 0")
    e(f"v_mov_b32 {V(vT+4)}, {XCH+512}")
    e("s_lshl_b32 s50, s3, 2")
    e(f"v_add_u32 {V(vT+11)}, s50, {V(vMX)}")
    e(f"v_max3_f32 {m}, {SG(0)}, {SG(1)}, {SG(2)}")
    for k in range(3, 15, 2):
        e(f"v_max3_f32 {m}, {m}, {SG(k)}, {SG(k+1)}")
    e(f"v_max_f32 {m}, {m}, {SG(15)}")
    run(xlane_ops(m, "v_max_f32"))
    e(f"ds_write_b32 {V(vT+11)}, {m}")
    e(f"ds_write_b32 {V(vT+4)}, {l2}")
    e.wait(vm="Q0")
    load_v(vsched[2])
    scores(0)
    load_v(vsched[3])
    edge_bias(1)
    call("F_sm0", lambda: softmax(0))
    stamp()
    e.wait(vm="Q1")
    load_v(vsched[4])
    scores(1)
    load_v(vsched[5])
    call("F_sm1", lambda: softmax(1))
    load_v(vsched[6])
    stamp()
    e.wait(lg="all")
    e("s_barrier")
    e(f"ds_read_b128 {V(vT+4,4)}, {V(vMX)}", tag="mx")
    load_v(vsched[7])
    e.wait(lg="all")
    e(f"v_max3_f32 {m}, {V(vT+4)}, {V(vT+5)}, {V(vT+6)}")
    e(f"v_max_f32 {m}, {m}, {V(vT+7)}")
    e(f"v_mul_f32 {V(vT+8)}, s49, {m}")
    for k in range(16):
        e(f"v_fma_f32 {SG(k)}, {SG(k)}, s49, -{V(vT+8)}")
    for k in range(16):
        e(f"v_exp_f32 {SG(k)}, {SG(k)}")
    e(f"v_add_f32 {l}, {SG(0)}, {SG(1)}")
    for k in range(2, 16):
        e(f"v_add_f32 {l}, {l}, {SG(k)}")
    for k in range(8):
        e(f"v_cvt_pk_bf16_f32 {QG(k)}, {SG(2*k)}, {SG(2*k+1)}")
    run(xlane_ops(l, "v_add_f32"))
    e(f"ds_write_b128 {V(vPW)}, {QG(0,4)} offset:6144")
    e(f"ds_write_b128 {V(vPW)}, {QG(4,4)} offset:7168")
    e(f"ds_write_b32 {V(vT+11)}, {l} offset:256")
    vcap = vcap2
    load_v(15)
    if not q2in:
        load_q(2)
    edge_bias(2)
    e("s_mov_b32 s56, 0")
    e("s_mov_b32 s61, 0")
    stamp()
    e.wait(vm="V01", lg="all")
    e("s_barrier")
    if qmode == 1:
        load_q(2)
    e(f"ds_read_b128 {PG(0,4)}, {V(vPR)} offset:0", tag="pg")
    run(job_reads(0))
    for ks in range(1, 8):
        e(f"ds_read_b128 {PG(4*ks,4)}, {V(vPR)} offset:{(ks//2)*SCRB + (ks%2)*1024}", tag="pg")
    e(f"ds_read_b128 {V(vT+4,4)}, {V(vMX)} offset:256", tag="lx")
    for j in range(1, D):
        run(job_reads(j))
    for j in range(8):
        valu = []
        if j == 4:
            valu = [T(f"v_add_f32 {V(vT+9)}, {V(vT+4)}, {V(vT+5)}"), T(f"v_add_f32 {V(vT+9)}, {V(vT+9)}, {V(vT+6)}"),
                    T(f"v_add_f32 {V(vT+9)}, {V(vT+9)}, {V(vT+7)}")]
        do_job(j, 8 + D - 2, [], valu)
    if qmode:
        load_q(3 if qmode == 1 else 2)
    entry_lg = [t for t in e.lg if t in ("j8", "j9", "j10")]
    e.lg[:] = entry_lg
    call("F_pv", pv_pair)
    stamp()
    if probe:
        e("s_getreg_b32 s96, hwreg(HW_REG_IB_STS)")
    for j in (20, 21, 22):
        run(job_reads(j))
    q3 = load_q_ops(3) if q3pos == 2 else []
    run(q3)
    for j in (20, 21, 22):
        e.wait(lg=f"j{j}")
        run(job_mfmas(j))
    stamp()
    if probe:
        e("s_getreg_b32 s97, hwreg(HW_REG_IB_STS)")
    e("s_mov_b32 s57, s42")
    held = [o for c in range(3) for o in store_ops(c, True)]
    if imajor:
        held = [held[4 * c + i] for i in range(4) for c in range(3)]
    cuts = [sum(pace[:k]) for k in range(len(pace) + 1)]
    hs = lambda k: held[cuts[k]:cuts[k+1]]
    assert cuts[-1] == 12
    e.wait(vm="Q2")
    parts = [T(f"buffer_store_dwordx2 {V(vT+8,2)}, {V(vML)}, {SW}, 0 offen sc1", "part")]
    parts += [T(f"buffer_store_dwordx4 {OG(4*i,4)}, {V(vWS)}, {SW}, 0 offen offset:{256*i} sc1", "part") for i in range(3)]
    scores(2, parts + hs(0) + hs(1))
    run(hs(2))
    stamp()
    if probe:
        e("s_getreg_b32 s98, hwreg(HW_REG_IB_STS)")
    fstamp()
    edge_bias(3)
    call("F_sm0", lambda: softmax(0))
    stamp()
    fstamp()
    if lite == "q":
        e.wait(vm="Q3")
        seq[0] = 300; stamp()
        e.wait(vm="part")
        stamp(); seq[0] = 9
    e.wait(vm=["Q3", "part"])
    if lite == "r":
        seq[0] = 200; stamp(); seq[0] = 9
    e(f"v_mov_b32 {V(vT+5)}, 1")
    e(f"v_mov_b32 {V(vT+4)}, {XCH+512}")
    e("s_mov_b64 exec, 1")
    e(f"ds_add_rtn_u32 {V(vPR)}, {V(vT+4)}, {V(vT+5)}", tag="cnt")
    e("s_mov_b64 exec, -1")
    for b in range(4):
        e(f"v_add_u32 {V(vVR+b)}, {2*TILEB}, {V(vVR+b)}")
    e.wait(lg="all")
    e(f"v_readfirstlane_b32 s61, {V(vPR)}")
    e("s_cmp_lg_u32 s61, 3")
    e("s_cbranch_scc1 L_nosig")
    e("s_lshl_b32 s44, s40, 2")
    e(f"v_mov_b32 {V(vT+4)}, s44")
    e(f"v_mov_b32 {V(vPW)}, 1")
    e("s_mov_b64 exec, 1")
    sv = list(e.vm)
    e(f"buffer_atomic_add {V(vPW)}, {V(vT+4)}, {SD}, 0 offen sc0", tag="atom")
    e.vm[:] = sv + ["sigmark"]
    e("s_mov_b64 exec, -1")
    e.label("L_nosig")
    run(hs(3))
    pre = [o for j in range(8, 8 + D - 1) for o in job_reads(j)]
    mix = list(pre)
    for k, o in enumerate(hs(4)):
        mix.insert((len(pre) * (2 * k + 1)) // (2 * len(hs(4))) + k, o)
    scores(3, mix)
    run(hs(5))
    stamp()
    fstamp()
    if not nob3:
        call("F_sm1", lambda: softmax(1))
    run(hs(6))
    if wb:
        if wb == "w0":
            e("s_cmp_lg_u32 s3, 0")
            e("s_cbranch_scc1 L_nowb")
        e("buffer_wbl2 sc1")
        if wb == "w0":
            e.label("L_nowb")
    stamp()
    fstamp()
    if chk < 0:
        check_arrival(e, CB, W, SW, vL, vT, len(e.vm) - 1 - e.vm.index("sigmark"))
    e("s_mov_b32 s56, 1")
    e(f"s_add_i32 s57, s42, {2*TILEB}")
    assert e.lg == entry_lg, (e.lg, entry_lg)
    call("F_pv", pv_pair)
    stamp()
    fstamp()
    fstamp(True)
    e("s_cmp_lg_u32 s61, 7")
    e("s_cbranch_scc1 L_fin")
    e("s_waitcnt vmcnt(12)")
    e(f"v_max3_f32 {m}, {W(0)}, {W(2)}, {W(4)}")
    e(f"v_max3_f32 {m}, {m}, {W(6)}, {W(8)}")
    e(f"v_max3_f32 {m}, {m}, {W(10)}, {W(12)}")
    e(f"v_max_f32 {m}, {m}, {W(14)}")
    for s in range(8):
        e(f"v_sub_f32 {W(2*s)}, {W(2*s)}, {m}")
    for s in range(8):
        e(f"v_exp_f32 {W(2*s)}, {W(2*s)}")
    e(f"v_mul_f32 {l}, {W(0)}, {W(1)}")
    for s in range(1, 8):
        e(f"v_fmac_f32 {l}, {W(2*s)}, {W(2*s+1)}")
    e(f"v_rcp_f32 {l}, {l}")
    X = R("v", 120)
    for s in range(8):
        for k in range(6):
            if s == 0:
                e(f"v_mul_f32 {X(k)}, {W(0)}, {CB(k)}")
            else:
                e(f"v_fmac_f32 {X(k)}, {W(2*s)}, {CB(6*s+k)}")
    for k in range(6):
        e(f"v_mul_f32 {X(k)}, {X(k)}, {l}")
    for k in range(3):
        e(f"v_cvt_pk_bf16_f32 {X(k)}, {X(2*k)}, {X(2*k+1)}")
    e(f"v_mul_u32_u24 {tmp}, 12, {V(vL)}")
    e(f"buffer_store_dwordx3 {X(0,3)}, {tmp}, {SO}, 0 offen {sf}")
    e.label("L_fin")
    if stamps:
        e("s_waitcnt vmcnt(0)")
        stamp()
        e("s_load_dwordx2 s[20:21], s[0:1], 56")
        e("s_waitcnt lgkmcnt(0)")
        e("s_mov_b32 s22, 0x1000000")
        e("s_lshl_b32 s44, s2, 2")
        e("s_add_u32 s44, s44, s3")
        e("s_lshl_b32 s44, s44, 6")
        e("s_add_u32 s44, s44, 0x100000")
        e(f"v_mov_b32 {V(vT+1)}, 0")
        if probe:
            for k, reg in enumerate((96, 97, 98)):
                e(f"v_mov_b32 {V(vT)}, s{reg}")
                e(f"buffer_store_dword {V(vT)}, {V(vT+1)}, {SW}, s44 offen offset:{48+4*k}")
                e("s_nop 1")
        e(f"v_mov_b32 {V(vT)}, s61")
        e(f"buffer_store_dword {V(vT)}, {V(vT+1)}, {SW}, s44 offen offset:60")
        e("s_nop 1")
        for k in range(nst[0]):
            e(f"v_mov_b32 {V(vT)}, s{64+2*k}")
            e(f"buffer_store_dword {V(vT)}, {V(vT+1)}, {SW}, s44 offen offset:{4*k}")
            e("s_nop 1")
    if amp:
        e("s_waitcnt vmcnt(0)")
        e("s_memrealtime s[66:67]")
        e("s_waitcnt lgkmcnt(0)")
        e("s_sub_u32 s90, s66, s64")
        e("s_min_u32 s90, s90, 4000")
        e(f"s_mul_i32 s90, s90, {amp}")
        e("; AMPSPIN")
    if span:
        a, am, b, bm, Amp = span
        e("s_waitcnt vmcnt(0)")
        e("s_mov_b64 exec, 1")
        for slot, (k, md) in enumerate(((a, am), (b, bm))):
            src = f"s{64+2*k}"
            if md == "min":
                e(f"s_not_b32 s92, {src}"); src = "s92"
            e(f"v_mov_b32 v36, {src}")
            e(f"v_mov_b32 v37, {192 + 4*slot}")
            e(f"buffer_atomic_umax v36, v37, {SD}, 0 offen")
        e("s_waitcnt vmcnt(0)")
        e("v_mov_b32 v36, 1")
        e("v_mov_b32 v37, 188")
        e(f"buffer_atomic_add v36, v37, {SD}, 0 offen sc0")
        e("s_waitcnt vmcnt(0)")
        e("v_readfirstlane_b32 s92, v36")
        e("s_cmp_lg_u32 s92, 1023")
        e("s_cbranch_scc1 L_end")
        e("v_mov_b32 v38, 0")
        e("v_mov_b32 v39, 0")
        e("v_mov_b32 v37, 192")
        e(f"buffer_atomic_add v38, v37, {SD}, 0 offen sc0")
        e(f"buffer_atomic_add v39, v37, {SD}, 0 offen offset:4 sc0")
        e("s_waitcnt vmcnt(0)")
        e("v_readfirstlane_b32 s90, v38")
        e("v_readfirstlane_b32 s91, v39")
        if am == "min":
            e("s_not_b32 s90, s90")
        if bm == "min":
            e("s_not_b32 s91, s91")
        e("s_sub_u32 s90, s91, s90")
        e("s_min_u32 s90, s90, 4000")
        e(f"s_mul_i32 s90, s90, {Amp}")
        e("; AMPSPIN")
    e.label("L_end")
    e("s_endpgm")
    text = e.finish() + "L_codeend:\n    ; never executed: keeps the instruction prefetch inside .text (s_endpgm words)\n    .fill 64, 4, 0xbf810000\n"
    if span or amp:
        text = text.replace("    ; AMPSPIN\n", """    s_memrealtime s[92:93]
    s_waitcnt lgkmcnt(0)
    s_add_u32 s90, s90, s92
L_spin:
    s_memrealtime s[92:93]
    s_waitcnt lgkmcnt(0)
    s_sub_u32 s91, s92, s90
    s_cmp_lt_i32 s91, 0
    s_cbranch_scc1 L_spin
""")
    if nostore:
        text = "\n".join(l for l in text.split("\n") if not (l.strip().startswith("buffer_store_dwordx4") and "s[16:19]" in l))
        text = text.replace("s_waitcnt vmcnt(12)", "s_waitcnt vmcnt(0)")
    if qlin:
        text = text.replace(", v14, s[4:7]", ", v248, s[4:7]").replace(", v15, s[4:7]", ", v250, s[4:7]")
        text = text.replace("    s_barrier\n", "    v_add_u32 v250, 3072, v248\n    s_barrier\n", 1).replace("    s_waitcnt lgkmcnt(0)\n", "    s_waitcnt lgkmcnt(0)\n    v_add_u32 v250, 3072, v248\n", 1)
    if strip:
        drop = ("v_mfma", "ds_read_b64_tr", "ds_write_b64", "v_exp", "v_fma_f32", "v_max3", "v_cvt", "v_mul_f32", "v_add_f32",
                "v_mov_b32_dpp", "v_permlane", "v_max_f32", "v_rcp") + (("ds_read_b128",) if strip == 2 else ())
        text = "\n".join(l for l in text.split("\n") if not l.strip().startswith(drop))
    full = HEADER.format(lds=LDS_TOTAL, kn=KN) + text + FOOTER.format(kn=KN, nsgpr=100 if probe else 96)
    if pf:
        full = full.replace("CODE_LAST", str(code_size(full.replace("CODE_LAST", "0x1234"), KN) - 256))
    return full


def check_arrival(e, CB, W, SW, vL, vT, cnt):
    e("s_cmp_lg_u32 s61, 3")
    e("s_cbranch_scc1 L_notlast")
    e(f"s_waitcnt vmcnt({cnt})")
    e("v_readfirstlane_b32 s61, v28")
    e("s_cmp_lg_u32 s61, 7")
    e("s_cbranch_scc1 L_notlast")
    sv = list(e.vm)
    e(f"v_lshrrev_b32 {V(vT+4)}, 5, {V(vL)}")
    e(f"v_and_b32 {V(vT+5)}, 31, {V(vL)}")
    e(f"v_mul_u32_u24 {V(vT+5)}, 24, {V(vT+5)}")
    e(f"v_mul_u32_u24 {V(vT+6)}, 768, {V(vT+4)}")
    e(f"v_add_u32 {V(vT+5)}, {V(vT+5)}, {V(vT+6)}")
    e(f"v_lshlrev_b32 {V(vT+4)}, 6, {V(vT+4)}")
    e("s_mov_b32 s50, 12288")
    for k in range(4):
        e(f"buffer_load_dwordx4 {W(4*k,4)}, {V(vT+4)}, {SW}, s50 offen offset:{16*k} sc1")
    for s in range(8):
        e(f"s_mov_b32 s50, {s*1536}")
        e(f"buffer_load_dwordx4 {CB(6*s,4)}, {V(vT+5)}, {SW}, s50 offen sc1")
        e(f"buffer_load_dwordx2 {CB(6*s+4,2)}, {V(vT+5)}, {SW}, s50 offen offset:16 sc1")
    e.vm[:] = sv
    e.label("L_notlast")


if __name__ == "__main__":
    import ast
    out = sys.argv[1]
    kw = {}
    for a in sys.argv[2:]:
        k, v = a.split("=", 1)
        try:
            kw[k] = ast.literal_eval(v)
        except Exception:
            kw[k] = v
    open(out, "w").write(gen(**kw))
```
